```python
import torch

def _softmax(x, axis=-1):
    return torch.softmax(x, dim=axis)
def _gelu(x):
    return torch.nn.functional.gelu(x, approximate="tanh")
def _silu(x):
    return torch.nn.functional.silu(x)
def _sigmoid(x):
    return torch.sigmoid(x)
def _layernorm(x, axis=-1, eps=1e-5):
    m = x.mean(dim=axis, keepdim=True)
    v = x.var(dim=axis, keepdim=True, unbiased=False)
    return (x - m) / torch.sqrt(v + eps)
def _scatter_add(tgt, idx, src, axis=0):
    return tgt.clone().index_add_(axis, idx, src)
def _segment_sum(src, seg, n):
    out = torch.zeros((n,) + src.shape[1:], dtype=src.dtype)
    return out.index_add_(0, seg, src)
def _pad(x, pw):
    flat = tuple(v for pair in reversed(pw) for v in pair)
    return torch.nn.functional.pad(x, flat)

kernel_name = 'interleave_layers__sliding_block_cached__sliding_block_cached__decode'

def setup_inputs():

    _w = (lambda a: (lambda t: t.to(torch.bfloat16) if t.is_floating_point() else t)(torch.as_tensor(a)))
    def _A_setup():
        B, Sq, D = 2, 1, 576
        Hq, Hkv, Sk, Dh = 32, 16, 4096, 128
        assert Hq % Hkv == 0, (Hq, Hkv)
        return {
            "x": _w((lambda *s: torch.randn(*s, dtype=torch.bfloat16) * 0.05)(B, Sq, D)),
            "k_cache": _w((lambda *s: torch.randn(*s, dtype=torch.bfloat16) * 0.8)(B, Hkv, Sk, Dh)),
            "v_cache": _w((lambda *s: torch.randn(*s, dtype=torch.bfloat16) * 1.6)(B, Hkv, Sk, Dh)),
            "wq": _w((lambda *s: torch.randn(*s, dtype=torch.bfloat16) * 0.8)(D, Hq * Dh) * (D ** -0.5)),
            "wo": _w((lambda *s: torch.randn(*s, dtype=torch.bfloat16) * 1.6)(Hq * Dh, D) * ((Hq * Dh) ** -0.5)),
        }
    _A_in = _A_setup()

    def _B_setup():
        B, Sq, D = 2, 1, 576
        Hq, Hkv, Sk, Dh = 32, 16, 4096, 128
        assert Hq % Hkv == 0, (Hq, Hkv)
        return {
            "x": _w((lambda *s: torch.randn(*s, dtype=torch.bfloat16) * 0.05)(B, Sq, D)),
            "k_cache": _w((lambda *s: torch.randn(*s, dtype=torch.bfloat16) * 3.2)(B, Hkv, Sk, Dh)),
            "v_cache": _w((lambda *s: torch.randn(*s, dtype=torch.bfloat16) * 0.4)(B, Hkv, Sk, Dh)),
            "wq": _w((lambda *s: torch.randn(*s, dtype=torch.bfloat16) * 3.2)(D, Hq * Dh) * (D ** -0.5)),
            "wo": _w((lambda *s: torch.randn(*s, dtype=torch.bfloat16) * 0.4)(Hq * Dh, D) * ((Hq * Dh) ** -0.5)),
        }
    _B_in = _B_setup()

    return {
        "A_x": _A_in["x"],
        "A_k_cache": _A_in["k_cache"],
        "A_v_cache": _A_in["v_cache"],
        "A_wq": _A_in["wq"],
        "A_wo": _A_in["wo"],
        "B_x": _B_in["x"],
        "B_k_cache": _B_in["k_cache"],
        "B_v_cache": _B_in["v_cache"],
        "B_wq": _B_in["wq"],
        "B_wo": _B_in["wo"],
    }

def reference(A_x, A_k_cache, A_v_cache, A_wq, A_wo, B_x, B_k_cache, B_v_cache, B_wq, B_wo):
    def _A_ref(x, k_cache, v_cache, wq, wo):
        B, Sq, D = x.shape
        Hq, Dh = 32, 128
        Hkv, Sk = k_cache.shape[1], k_cache.shape[2]
        W = min(4096, max(256, Sk // 4))
        rep = Hq // Hkv
        q = (lambda x, *d: x.permute(*d))((x @ wq).reshape(B, Sq, Hq, Dh), 0, 2, 1, 3)
        k = (lambda x, n, axis: torch.repeat_interleave(x, n, dim=axis))(k_cache[:, :, Sk - W:, :], rep, axis=1)
        v = (lambda x, n, axis: torch.repeat_interleave(x, n, dim=axis))(v_cache[:, :, Sk - W:, :], rep, axis=1)
        scores = torch.einsum("bhqd,bhkd->bhqk", q, k) * (Dh ** -0.5)
        p = _softmax(scores, axis=-1)
        o = torch.einsum("bhqk,bhkd->bhqd", p, v)
        return (lambda x, *d: x.permute(*d))(o, 0, 2, 1, 3).reshape(B, Sq, Hq * Dh) @ wo

    def _B_ref(x, k_cache, v_cache, wq, wo):
        B, Sq, D = x.shape
        Hq, Dh = 32, 128
        Hkv, Sk = k_cache.shape[1], k_cache.shape[2]
        W = min(4096, max(256, Sk // 4))
        rep = Hq // Hkv
        q = (lambda x, *d: x.permute(*d))((x @ wq).reshape(B, Sq, Hq, Dh), 0, 2, 1, 3)
        k = (lambda x, n, axis: torch.repeat_interleave(x, n, dim=axis))(k_cache[:, :, Sk - W:, :], rep, axis=1)
        v = (lambda x, n, axis: torch.repeat_interleave(x, n, dim=axis))(v_cache[:, :, Sk - W:, :], rep, axis=1)
        scores = torch.einsum("bhqd,bhkd->bhqk", q, k) * (Dh ** -0.5)
        p = _softmax(scores, axis=-1)
        o = torch.einsum("bhqk,bhkd->bhqd", p, v)
        return (lambda x, *d: x.permute(*d))(o, 0, 2, 1, 3).reshape(B, Sq, Hq * Dh) @ wo

    x = A_x
    x = x + _A_ref(_layernorm(x, axis=-1), A_k_cache, A_v_cache, A_wq, A_wo)
    x = x + _B_ref(_layernorm(x, axis=-1), B_k_cache, B_v_cache, B_wq, B_wo)
    x = x + _A_ref(_layernorm(x, axis=-1), A_k_cache, A_v_cache, A_wq, A_wo)
    x = x + _B_ref(_layernorm(x, axis=-1), B_k_cache, B_v_cache, B_wq, B_wo)
    return x
```

```python
import re

TRANS = ("v_exp_f32", "v_log_f32", "v_rcp_f32", "v_rsq_f32", "v_sqrt_f32")
RW_DST = ("v_fmac_", "v_dot2c_", "v_smfmac_", "v_pk_fmac")


def _regs(tok, pfx):
    tok = tok.strip().lstrip("-").replace("|", "")
    m = re.fullmatch(r"abs\((.*)\)", tok)
    if m:
        tok = m.group(1)
    m = re.fullmatch(pfx + r"(\d+)", tok)
    if m:
        return [int(m.group(1))]
    m = re.fullmatch(pfx + r"\[(\d+):(\d+)\]", tok)
    if m:
        return list(range(int(m.group(1)), int(m.group(2)) + 1))
    return []


def _sregs(tok):
    t = tok.strip()
    if t == "vcc":
        return ["vcc"]
    return _regs(t, "s")


class Asm:
    def __init__(self, strict_dpp=True):
        self.lines = []
        self.pos = 0
        self.valu_w = {}
        self.trans_w = {}
        self.dot_w = {}
        self.mfma_w = {}
        self.sgpr_w = {}
        self.store_r = {}
        self.strict_dpp = strict_dpp
        self.nops = 0

    def raw(self, s):
        self.lines.append(s)

    def label(self, l):
        self.lines.append(l + ":")

    def c(self, s):
        self.lines.append("    ; " + s)

    def nop(self, n):
        while n > 0:
            k = min(n, 16)
            self.lines.append(f"    s_nop {k-1}")
            self.pos += k
            self.nops += k
            n -= k

    def settle(self):
        need = 0
        for r, (p, _, _) in self.mfma_w.items():
            need = max(need, 8 - (self.pos - p))
        for d, w in ((self.valu_w, 2), (self.sgpr_w, 5), (self.store_r, 2), (self.dot_w, 3)):
            for r, p in d.items():
                need = max(need, w - (self.pos - p))
        if need > 0:
            self.nop(need)

    def __call__(self, text):
        for ln in text.split("\n"):
            ln = ln.strip()
            if ln:
                self._one(ln)

    def _one(self, ln):
        if ln.endswith(":"):
            self.lines.append(ln)
            return
        if ln.startswith(";"):
            self.lines.append("    " + ln)
            return
        body = ln.split(";")[0].strip()
        parts = body.split(None, 1)
        op = parts[0]
        rest = parts[1] if len(parts) > 1 else ""
        toks = []
        for t in re.split(r",(?![^\[]*\])", rest):
            t = t.strip()
            toks.append(t.split()[0] if t else t)
        need = 0

        def chk(d, regs, w):
            nonlocal need
            for r in regs:
                if r in d:
                    p = d[r][0] if isinstance(d[r], tuple) else d[r]
                    need = max(need, w - (self.pos - p))

        is_mfma = op.startswith("v_mfma") or op.startswith("v_smfmac")
        is_valu = op.startswith("v_") and not is_mfma
        is_vmem = op.startswith(("buffer_", "global_"))
        is_ds = op.startswith("ds_")
        if op == "s_nop":
            self.lines.append("    " + ln)
            self.pos += int(toks[0], 0) + 1
            return
        if is_mfma:
            d = _regs(toks[0], "v")
            ab = _regs(toks[1], "v") + _regs(toks[2], "v")
            if op.startswith("v_smfmac"):
                ab += _regs(toks[3], "v")
                cin = d
            else:
                cin = _regs(toks[3], "v")
            chk(self.valu_w, ab + cin, 2)
            chk(self.dot_w, ab + cin, 3)
            chk(self.mfma_w, ab, 8)
            for r in cin:
                if r in self.mfma_w:
                    p, f, n = self.mfma_w[r]
                    if not (f == cin[0] and n == len(cin)):
                        need = max(need, 6 - (self.pos - p))
            if not cin:
                chk(self.mfma_w, d, 8)
            if need > 0:
                self.nop(need)
            self.lines.append("    " + ln)
            self.pos += 1
            for r in d:
                self.mfma_w[r] = (self.pos, d[0], len(d))
                self.valu_w.pop(r, None)
            return
        if is_valu:
            dpp = any(k in body for k in ("quad_perm", "row_shl", "row_shr", "row_ror", "row_mirror", "row_half_mirror", "row_newbcast", "row_bcast"))
            both = op.startswith(("v_permlane16_swap", "v_permlane32_swap", "v_swap_b32"))
            sdst = []
            if op.startswith("v_cmp") or op.startswith(("v_readfirstlane", "v_readlane")):
                dst = []
                sdst = _sregs(toks[0])
                srcs = toks[1:]
            elif both:
                dst = _regs(toks[0], "v") + _regs(toks[1], "v")
                srcs = toks[:2]
            else:
                dst = _regs(toks[0], "v")
                srcs = toks[1:]
                if "_co_" in op:
                    sdst = _sregs(toks[1])
                    srcs = toks[2:]
            src = [r for t in srcs for r in _regs(t, "v")]
            ssrc = [r for t in srcs for r in _sregs(t)]
            acc = dst if op.startswith(RW_DST) else []
            chk(self.mfma_w, src + dst, 8)
            chk(self.store_r, dst, 2)
            chk(self.sgpr_w, ssrc, 4 if op.startswith(("v_readlane", "v_writelane")) else 2)
            if op not in TRANS:
                chk(self.trans_w, src + acc, 1)
            if op.startswith("v_dot2c"):
                chk(self.dot_w, src, 3)
            else:
                chk(self.dot_w, src + dst, 3)
            if dpp:
                if self.strict_dpp:
                    chk(self.valu_w, src + acc, 2)
                else:
                    chk(self.valu_w, _regs(srcs[0], "v"), 2)
            if op.startswith("v_permlane"):
                chk(self.valu_w, src, 2)
            if op.startswith(("v_readfirstlane", "v_readlane")):
                chk(self.valu_w, src, 1)
            if need > 0:
                self.nop(need)
            self.lines.append("    " + ln)
            self.pos += 1
            for r in dst:
                self.valu_w[r] = self.pos
                self.mfma_w.pop(r, None)
                self.trans_w.pop(r, None)
                self.dot_w.pop(r, None)
                if op in TRANS:
                    self.trans_w[r] = self.pos
                if op.startswith("v_dot2"):
                    self.dot_w[r] = self.pos
            for r in sdst:
                self.sgpr_w[r] = self.pos
            return
        if is_vmem or is_ds:
            allv = [r for t in toks for r in _regs(t, "v")]
            alls = [r for t in toks for r in _sregs(t)]
            chk(self.mfma_w, allv, 8)
            chk(self.dot_w, allv, 3)
            if is_vmem:
                chk(self.sgpr_w, alls, 5)
            if "load" in op or "ds_read" in op:
                chk(self.store_r, _regs(toks[0], "v"), 1)
            if need > 0:
                self.nop(need)
            self.lines.append("    " + ln)
            self.pos += 1
            if is_vmem and "store" in op and ("x3" in op or "x4" in op):
                dt = toks[0] if op.startswith("buffer_") else toks[1]
                for r in _regs(dt, "v"):
                    self.store_r[r] = self.pos
            return
        self.lines.append("    " + ln)
        self.pos += 1

    def text(self):
        return "\n".join(self.lines) + "\n"
```

```python
import sys, struct, math
from asmlib import Asm

N = "interleave_layers__sliding_block_cached__sliding_block_cached__decode"
LST = 0x4000
QM, OM, XM, SM, ML, XP = 0x0, 0x1000, 0x3000, 0x3a00, 0x3c00, 0x100000
STAMP_OFF = 128 << 20
NST = 52
DPPALL = "row_mask:0xf bank_mask:0xf"
LDS_LOC = 12288


def f2u(x):
    return struct.unpack("<I", struct.pack("<f", x))[0]


DEF = dict(nt="nt", stamps=False, dq=2, dx=2, do=2, dg=2, ds=1, spin=0x8000, force_sc1=False,
           sleep_q=0, sleep_x=0, sleep_o=0, sleep_s=0, sleep_f=4, stag_g=0, pre_g=0, stag=0, sm=None, fine=False, kvw=0, cyc=(),
           kb_at="qok", vb_at="end", woa_at="q0", wob_at="q1")


def gen(**kw):
    P = dict(DEF)
    P.update(kw)
    nt = P["nt"]
    A = Asm()
    uid = [0]

    def lab(s):
        uid[0] += 1
        return f"L_{s}_{uid[0]}"

    A.raw(f"""; persistent fused decode kernel: 8 groups x (16 weight WGs + 16 KV WGs), generated by my own script
; @launch grid=(256,1,1) block=(512,1,1) lds=16384
.amdgcn_target "amdgcn-amd-amdhsa--gfx950"
.text
.globl {N}_kernel
.p2align 8
.type {N}_kernel,@function
{N}_kernel:""")
    sW, sK, sIDX, sL, sLO, sLOC, sSPIN = "s3", "s36", "s37", "s38", "s39", "s40", "s41"
    sM8 = "s[42:43]"
    sGB = "s96"
    sPE, sPO = "s44", "s45"
    B1A, B2A, B1B, B2B, WS, DBG, XS, OUT = "s[4:7]", "s[8:11]", "s[12:15]", "s[16:19]", "s[20:23]", "s[24:27]", "s[28:31]", "s[32:35]"
    smf = "v_smfmac_f32_16x16x64_bf16"
    r4 = lambda r: f"v[{r}:{r+3}]"
    r8 = lambda r: f"v[{r}:{r+7}]"
    r2 = lambda r: f"v[{r}:{r+1}]"

    def stamp(j):
        if P["stamps"] and (P["sm"] is None or j in P["sm"] or j >= 12):
            A(f"{'s_memtime' if j in P['cyc'] else 's_memrealtime'} s[{64+2*j}:{65+2*j}]")

    def fine(j):
        if P["fine"]:
            stamp(j)

    def dump_stamps(first_s, n, idx, wave_cmp, slot=0):
        if not P["stamps"]:
            return
        l = lab("nost")
        A(f"s_cmp_eq_u32 {sW}, {wave_cmp}\ns_cbranch_scc0 {l}")
        A("s_waitcnt lgkmcnt(0)")
        A(f"s_mul_i32 s62, s2, {NST*8}\ns_add_u32 s62, s62, {STAMP_OFF}")
        if isinstance(idx, int):
            A(f"s_add_u32 s62, s62, {idx*8}")
        else:
            A(f"s_mul_i32 s63, {idx}, 96\ns_add_u32 s62, s62, s63\ns_add_u32 s62, s62, {32+8*slot}")
        A("s_mov_b64 exec, 1\nv_mov_b32 v62, 0")
        for i in range(n):
            A(f"v_mov_b32 v60, s{64+2*(first_s+i)}\nv_mov_b32 v61, s{65+2*(first_s+i)}")
            A(f"buffer_store_dwordx2 v[60:61], v62, {WS}, s62 offen offset:{8*i}")
        A("s_mov_b64 exec, -1")
        A.label(l)

    def srd(b, nrec):
        r = int(b[2:].split(":")[0])
        A(f"s_mov_b32 s{r+2}, {nrec}\ns_mov_b32 s{r+3}, 0x20000")

    def store_mode(instr):
        if P["force_sc1"]:
            A(instr + " sc1")
            return
        a, b = lab("sg"), lab("se")
        A(f"s_cmp_eq_u32 {sLOC}, 0\ns_cbranch_scc1 {a}")
        n0 = A.nops
        A(instr)
        assert A.nops == n0
        A(f"s_branch {b}")
        A.label(a)
        A(instr + " sc1")
        A.label(b)

    def maxtree(regs, tmp):
        rs = [f"v{r}" for r in regs]
        ti = 0
        while len(rs) > 1:
            t = f"v{tmp+ti}"
            ti ^= 1
            if len(rs) >= 3:
                A(f"v_max3_u32 {t}, {rs[0]}, {rs[1]}, {rs[2]}")
                rs = rs[3:] + [t]
            else:
                A(f"v_max_u32 {t}, {rs[0]}, {rs[1]}")
                rs = [t]
        A(f"v_cmp_eq_u32 vcc, -1, {rs[0]}")

    def poll(loads, regs, depth, tmp, sleep=0, check=None, stag=None):
        n = len(loads)
        top, done = lab("poll"), lab("pdone")
        A(f"s_mov_b32 {sSPIN}, {P['spin']}")
        if stag is None:
            stag = P["stag"]
        for _ in range(depth - 1):
            for l in loads:
                A(l)
            if stag:
                A(f"s_sleep {stag}")
        A.label(top)
        for l in loads:
            A(l)
        A(f"s_sub_u32 {sSPIN}, {sSPIN}, 1\ns_cbranch_scc1 {done}")
        if sleep:
            A(f"s_sleep {sleep}")
        A(f"s_waitcnt vmcnt({n*(depth-1)})")
        if check:
            check()
        else:
            maxtree(regs, tmp)
        A(f"s_cbranch_vccnz {top}")
        A.label(done)

    def flag_store():
        A("s_getreg_b32 s46, hwreg(HW_REG_XCC_ID, 0, 4)")
        A(f"s_or_b32 s46, s46, 0x80\ns_lshl_b32 s47, {sK}, 5\ns_add_u32 s47, s47, {sIDX}")
        A("v_mov_b32 v60, s46\nv_mov_b32 v61, 0\ns_mov_b64 exec, 1")
        A(f"buffer_store_byte v60, v61, {DBG}, s47 offen sc1")
        A("s_mov_b64 exec, -1")

    def group_flags():
        top, out = lab("flag"), lab("flagd")
        A(f"s_mov_b32 {sSPIN}, {P['spin']}\ns_lshl_b32 s47, {sK}, 5")
        A.label(top)
        A("s_load_dwordx8 s[48:55], s[24:25], s47 glc")
        A(f"s_sub_u32 {sSPIN}, {sSPIN}, 1\ns_cbranch_scc1 {out}")
        A("s_waitcnt lgkmcnt(0)")
        A("s_and_b64 s[62:63], s[48:49], s[50:51]\ns_and_b64 s[62:63], s[62:63], s[52:53]\ns_and_b64 s[62:63], s[62:63], s[54:55]\ns_and_b32 s62, s62, s63")
        A(f"s_and_b32 s63, s62, 0x80808080\ns_cmp_eq_u32 s63, 0x80808080\ns_cbranch_scc1 {out}")
        if P["sleep_f"]:
            A(f"s_sleep {P['sleep_f']}")
        A(f"s_branch {top}")
        A.label(out)
        A("s_waitcnt lgkmcnt(0)")
        A("s_or_b64 s[48:49], s[48:49], s[50:51]\ns_or_b64 s[48:49], s[48:49], s[52:53]\ns_or_b64 s[48:49], s[48:49], s[54:55]\ns_or_b32 s48, s48, s49")
        A("s_getreg_b32 s46, hwreg(HW_REG_XCC_ID, 0, 4)")
        A("s_or_b32 s46, s46, 0x80\ns_mul_i32 s46, s46, 0x01010101")
        A(f"s_cmp_eq_u32 s62, s46\ns_cselect_b32 {sLOC}, 1, 0\ns_cmp_eq_u32 s48, s46\ns_cselect_b32 {sLOC}, {sLOC}, 0")
        A(f"v_mov_b32 v60, {LDS_LOC}\nv_mov_b32 v61, {sLOC}\nds_write_b32 v60, v61")

    def read_loc():
        A(f"v_mov_b32 v60, {LDS_LOC}\nds_read_b32 v61, v60\ns_waitcnt lgkmcnt(0)\nv_readfirstlane_b32 {sLOC}, v61")

    def if_l0(fn):
        l = lab("nl0")
        A(f"s_cmp_eq_u32 {sL}, 0\ns_cbranch_scc0 {l}")
        fn()
        A.label(l)

    def wait_l(n0, n1):
        if n0 == n1:
            A(f"s_waitcnt vmcnt({n0})")
            return
        a, b = lab("wa"), lab("wb")
        A(f"s_cmp_eq_u32 {sL}, 0\ns_cbranch_scc1 {a}\ns_waitcnt vmcnt({n1})\ns_branch {b}")
        A.label(a)
        A(f"s_waitcnt vmcnt({n0})")
        A.label(b)

    A("s_cmp_ge_u32 s2, 256\ns_cbranch_scc1 L_end")
    stamp(12)
    A(f"s_and_b32 {sK}, s2, 7\ns_lshr_b32 {sIDX}, s2, 3\ns_lshl_b32 {sGB}, {sK}, 16")
    A("s_load_dwordx2 s[20:21], s[0:1], 96\ns_load_dwordx2 s[24:25], s[0:1], 88")
    A("v_lshrrev_b32 v2, 6, v0\nv_and_b32 v1, 63, v0")
    A(f"v_readfirstlane_b32 {sW}, v2")
    A("v_and_b32 v3, 15, v1\nv_lshrrev_b32 v4, 4, v1")
    A("v_and_b32 v5, 7, v1\nv_bfe_u32 v6, v1, 3, 1")
    A(f"s_cmp_lt_u32 {sIDX}, 16\ns_cbranch_scc1 L_w")

    Q, A1, ST, C0, C1, CU = 16, 20, 24, 28, 32, 36
    aK, aV, gK, gV, SV = 64, 96, 128, 160, 192
    A("s_load_dwordx2 s[4:5], s[0:1], 8\ns_load_dwordx2 s[8:9], s[0:1], 16")
    A("s_load_dwordx2 s[12:13], s[0:1], 48\ns_load_dwordx2 s[16:17], s[0:1], 56")
    for b in (B1A, B2A, B1B, B2B):
        srd(b, 33554432)
    srd(WS, 268435456)
    srd(DBG, 256)
    sG, sB, sS, sKB0, sKB1, sF = "s56", "s57", "s58", "s59", "s60", "s44"
    A(f"s_bfe_u32 {sG}, {sIDX}, 0x10003\ns_bfe_u32 {sB}, {sIDX}, 0x10002\ns_and_b32 {sS}, {sIDX}, 3")
    A(f"s_lshl_b32 s46, {sK}, 1\ns_add_u32 s46, s46, {sG}\ns_lshl_b32 s46, s46, 20\ns_lshl_b32 s47, {sB}, 24\ns_add_u32 s46, s46, s47")
    A(f"s_lshl_b32 s47, {sS}, 16\ns_add_u32 s46, s46, s47\ns_lshl_b32 s47, {sW}, 13\ns_add_u32 s46, s46, s47")
    A(f"s_add_u32 {sKB0}, s46, {3072*256}\ns_add_u32 {sKB1}, {sKB0}, 4096")
    A("v_lshlrev_b32 v7, 8, v5\nv_lshl_add_u32 v7, v4, 4, v7\nv_lshlrev_b32 v9, 6, v6\nv_xor_b32 v8, 64, v9")
    A("v_add3_u32 v8, v7, v8, 0\nv_add_u32 v8, 2048, v8\nv_add_u32 v7, v7, v9")
    A("v_lshlrev_b32 v9, 10, v4\nv_lshl_add_u32 v9, v3, 4, v9")
    A("s_waitcnt lgkmcnt(0)")
    l = lab("nofl")
    A(f"s_cmp_eq_u32 {sW}, 0\ns_cbranch_scc0 {l}")
    flag_store()
    A.label(l)

    def k_loads(buf):
        for n in range(8):
            T, ks, part = n >> 2, (n >> 1) & 1, n & 1
            A(f"buffer_load_dwordx4 v[{gK+4*n}:{gK+4*n+3}], {'v8' if part else 'v7'}, {buf}, {sKB1 if T else sKB0} offen offset:{ks*128} {nt}")

    def v_loads(buf):
        for e in range(8):
            A(f"buffer_load_dwordx4 v[{gV+4*e}:{gV+4*e+3}], v9, {buf}, {sKB1 if e >> 2 else sKB0} offen offset:{(e&3)*256} {nt}")
    k_loads(B1A)
    v_loads(B2A)
    stamp(13)
    A("s_mov_b32 s42, 0xff00ff00\ns_mov_b32 s43, 0xff00ff00")
    A(f"s_lshl_b32 s46, {sG}, 11\ns_lshl_b32 s47, {sB}, 10\ns_add_u32 s46, s46, s47\ns_add_u32 s46, s46, {sGB}")
    A("v_lshlrev_b32 v10, 4, v1\nv_add_u32 v10, s46, v10")
    A(f"s_lshl_b32 s46, {sB}, 8\ns_add_u32 s46, s46, {sGB}\ns_add_u32 s46, s46, {SM}")
    A("v_lshlrev_b32 v11, 4, v3\nv_add_u32 v11, s46, v11")
    A(f"s_bfe_u32 s49, {sW}, 0x10001\ns_and_b32 s50, {sW}, 1")
    A(f"s_lshl_b32 s46, {sG}, 12\ns_and_b32 s47, {sW}, 3\ns_lshl_b32 s47, s47, 10\ns_add_u32 s46, s46, s47\ns_and_b32 s47, {sIDX}, 7\ns_lshl_b32 s47, s47, 4")
    A(f"s_add_u32 s46, s46, s47\ns_add_u32 s46, s46, {sGB}\ns_add_u32 s46, s46, {OM}")
    A("v_bfe_u32 v52, v1, 3, 2\nv_lshrrev_b32 v53, 5, v1\nv_lshlrev_b32 v12, 1, v5\nv_lshl_add_u32 v12, v52, 8, v12\nv_lshl_add_u32 v12, v53, 7, v12\nv_add_u32 v12, s46, v12")
    A(f"s_lshl_b32 s46, {sG}, 7\ns_lshl_b32 s47, s50, 6\ns_add_u32 s46, s46, s47\ns_and_b32 s47, {sIDX}, 7\ns_lshl_b32 s47, s47, 3\ns_add_u32 s46, s46, s47")
    A(f"s_add_u32 s46, s46, {sGB}\ns_add_u32 s46, s46, {ML}\nv_mov_b32 v13, s46")
    A("v_and_b32 v52, 1, v1\nv_mov_b32 v14, 0x88884444\nv_mov_b32 v53, 0xddddeeee\nv_cmp_eq_u32 vcc, 1, v52\nv_cndmask_b32 v14, v14, v53, vcc")
    A(f"s_lshl_b32 s46, {sW}, 10\nv_lshlrev_b32 v15, 5, v3\nv_lshrrev_b32 v52, 1, v4\nv_lshl_add_u32 v15, v52, 9, v15\nv_add_u32 v15, s46, v15")
    A(f"s_lshl_b32 s46, {sW}, 3\ns_add_u32 s46, s46, 8192\nv_lshlrev_b32 v2, 6, v6\nv_add_u32 v2, s46, v2")
    A("s_lshl_b32 s46, s49, 9\ns_lshl_b32 s47, s50, 8\ns_add_u32 s46, s46, s47\nv_lshlrev_b32 v26, 2, v1\nv_add_u32 v26, s46, v26")
    A(f"s_cmp_lt_u32 {sW}, 4\ns_cselect_b32 s46, s49, s50\ns_lshl_b32 s46, s46, 6\ns_add_u32 s46, s46, 8192\nv_lshlrev_b32 v27, 3, v5\nv_add_u32 v27, s46, v27")
    A(f"v_mov_b64 v[{ST}:{ST+1}], 0")
    A(f"s_mov_b32 {sL}, 0\ns_mov_b32 {sLO}, 0\ns_mov_b32 {sLOC}, 0")
    kb, vb = P["kb_at"], P["vb_at"]
    A.settle()
    A.label("L_kv_loop")
    A(f"s_cmp_ge_u32 {sL}, 2\ns_cbranch_scc1 L_kv_noprep")
    for pr in range(4):
        A(f"s_waitcnt vmcnt({14-2*pr})")
        la, lb, X = gK + 8 * pr, gK + 8 * pr + 4, aK + 8 * pr
        for r in range(4):
            A(f"v_cndmask_b32 v{X+r}, v{la+r}, v{lb+r}, {sM8}")
            A(f"v_mov_b32_dpp v{X+4+r}, v{la+r} row_ror:8 row_mask:0xf bank_mask:0x3")
            A(f"v_mov_b32_dpp v{X+4+r}, v{lb+r} row_ror:8 row_mask:0xf bank_mask:0xc")
    l = lab("noflag")
    A(f"s_cmp_eq_u32 {sL}, 0\ns_cbranch_scc0 {l}")
    stamp(14)
    l2 = lab("nw6")
    A(f"s_cmp_eq_u32 {sW}, 6\ns_cbranch_scc0 {l2}")
    group_flags()
    stamp(15)
    A.label(l2)
    if kb == "kprep":
        k_loads(B1B)
    A.label(l)
    for pr in range(4):
        wait_l(6 - 2 * pr + (8 if kb == "kprep" else 0), 6 - 2 * pr)
        e = 2 * pr
        for u in range(4):
            s0, s1 = gV + 4 * e + (u & 2), gV + 4 * (e + 1) + (u & 2)
            A(f"v_pk_mov_b32 v[{aV+8*u+e}:{aV+8*u+e+1}], v[{s0}:{s0+1}], v[{s1}:{s1+1}] op_sel:[{u&1},{u&1}]")

    def f():
        if kb == "vprep":
            k_loads(B1B)
        if vb == "vprep":
            v_loads(B2B)
        A("s_waitcnt lgkmcnt(0)\ns_barrier")
        read_loc()
    if_l0(f)
    A.label("L_kv_noprep")
    for r in range(C0, CU + 16, 2):
        A(f"v_mov_b64 v[{r}:{r+1}], 0")
    stamp(0)
    A("s_mov_b64 exec, 0x1ff")
    poll([f"buffer_load_dwordx2 v[{ST}:{ST+1}], v11, {WS}, {sLO} offen sc1"], [ST, ST + 1], P["ds"], 52, P["sleep_s"])
    A("s_mov_b64 exec, -1")
    stamp(4)
    ql = f"buffer_load_dwordx4 v[{Q}:{Q+3}], v10, {WS}, {sLO} offen sc1"
    SX, SQ = 58, 59
    A(f"v_add_f32_dpp v{SX}, v{ST}, v{ST} quad_perm:[1,0,3,2] {DPPALL}\nv_add_f32_dpp v{SQ}, v{ST+1}, v{ST+1} quad_perm:[1,0,3,2] {DPPALL}")
    for d in ("quad_perm:[2,3,0,1]", "row_half_mirror", "row_mirror"):
        A(f"v_add_f32_dpp v{SX}, v{SX}, v{SX} {d} {DPPALL}\nv_add_f32_dpp v{SQ}, v{SQ}, v{SQ} {d} {DPPALL}")
    A(f"v_mul_f32 v{SX}, {f2u(1/576.0):#x}, v{SX}\nv_mul_f32 v{SQ}, {f2u(1/576.0):#x}, v{SQ}")
    A(f"v_fma_f32 v{SQ}, -v{SX}, v{SX}, v{SQ}\nv_max_f32 v{SQ}, 0, v{SQ}")
    A(f"v_add_f32 v{SQ}, {f2u(1e-5):#x}, v{SQ}\nv_rsq_f32 v{SQ}, v{SQ}")
    A(f"v_mul_f32 v{SQ}, {f2u(128**-0.5*math.log2(math.e)):#x}, v{SQ}")
    A(f"v_readfirstlane_b32 {sF}, v{SQ}")
    poll([ql], [Q, Q + 1, Q + 2, Q + 3], P["dq"], 52, P["sleep_q"])
    stamp(1)
    if kb == "qok" or vb == "qok":
        def f():
            if kb == "qok":
                k_loads(B1B)
            if vb == "qok":
                v_loads(B2B)
        if_l0(f)
    KB = lambda T, ks: f"v[{aK+16*T+8*ks}:{aK+16*T+8*ks+7}]"
    A(f"{smf} v[{C0}:{C0+3}], v[{Q}:{Q+3}], {KB(0,0)}, v14")
    A(f"v_mov_b32_dpp v{A1}, v{Q} row_ror:8 {DPPALL}\nv_mov_b32_dpp v{A1+1}, v{Q+1} row_ror:8 {DPPALL}")
    A(f"{smf} v[{C1}:{C1+3}], v[{Q}:{Q+3}], {KB(1,1)}, v14")
    A(f"v_mov_b32_dpp v{A1+2}, v{Q+2} row_ror:8 {DPPALL}\nv_mov_b32_dpp v{A1+3}, v{Q+3} row_ror:8 {DPPALL}")
    A(f"{smf} v[{C0}:{C0+3}], v[{A1}:{A1+3}], {KB(0,1)}, v14")
    A(f"{smf} v[{C1}:{C1+3}], v[{A1}:{A1+3}], {KB(1,0)}, v14")
    U0, U1, T0, X, M, M2, XF = 52, 53, 54, 55, 56, 57, 61
    fine(5)
    A(f"v_add_f32 v{U0}, v{C0}, v{C0+1}\nv_add_f32 v{U1}, v{C0+2}, v{C0+3}")
    A(f"v_add_f32_dpp v{U0}, v{C1}, v{C1+1} quad_perm:[0,1,2,3] row_mask:0xc bank_mask:0xf")
    A(f"v_add_f32_dpp v{U1}, v{C1+2}, v{C1+3} quad_perm:[0,1,2,3] row_mask:0xc bank_mask:0xf")
    A(f"v_mov_b32 v{T0}, v{U0}")
    A(f"v_mov_b32_dpp v{U0}, v{U1} row_ror:8 row_mask:0xf bank_mask:0xc")
    A(f"v_mov_b32_dpp v{U1}, v{T0} row_ror:8 row_mask:0xf bank_mask:0x3")
    A(f"v_permlane16_swap_b32 v{U0}, v{U1}")
    A(f"v_add_f32 v{X}, v{U0}, v{U1}")
    A(f"v_mul_f32 v{XF}, {sF}, v{X}")
    fine(6)
    A(f"v_max_f32_dpp v{M}, v{X}, v{X} quad_perm:[1,0,3,2] {DPPALL}")
    A(f"v_max_f32_dpp v{M}, v{M}, v{M} quad_perm:[2,3,0,1] {DPPALL}")
    A(f"v_max_f32_dpp v{M2}, v{M}, v{M} row_half_mirror {DPPALL}\nv_max_f32_dpp v{M}, v{M}, v{M} row_half_mirror {DPPALL}")
    A(f"v_permlane16_swap_b32 v{M}, v{M2}")
    A(f"v_max_f32 v{T0}, v{M}, v{M2}\nv_max_f32 v{M}, v{M}, v{M2}")
    A(f"v_permlane32_swap_b32 v{M}, v{T0}")
    A(f"v_max_f32 v{M}, v{M}, v{T0}")
    A(f"v_fma_f32 v{X}, -v{M}, {sF}, v{XF}\nv_exp_f32 v{X}, v{X}")
    MF, LS = 62, 63
    fine(7)
    A(f"v_mul_f32 v{MF}, {sF}, v{M}")
    A(f"v_mov_b32_dpp v{U0}, v{X} quad_perm:[0,0,2,2] {DPPALL}\nv_mov_b32_dpp v{U1}, v{X} quad_perm:[1,1,3,3] {DPPALL}")
    A(f"v_cvt_pk_bf16_f32 v{A1}, v{U0}, v{U1}")
    A(f"v_add_f32 v{LS}, v{U0}, v{U1}")
    for r in (1, 2, 3):
        A(f"v_mov_b32_dpp v{A1+r}, v{A1} row_shl:{2*r} {DPPALL}")
    A(f"v_add_f32_dpp v{LS}, v{LS}, v{LS} quad_perm:[2,3,0,1] {DPPALL}")
    VB = lambda u: f"v[{aV+8*u}:{aV+8*u+7}]"
    fine(8)
    A(f"{smf} v[{CU}:{CU+3}], v[{A1}:{A1+3}], {VB(0)}, v14 abid:1")
    A(f"v_add_f32_dpp v{T0}, v{LS}, v{LS} row_half_mirror {DPPALL}\nv_add_f32_dpp v{LS}, v{LS}, v{LS} row_half_mirror {DPPALL}")
    A(f"{smf} v[{CU+4}:{CU+7}], v[{A1}:{A1+3}], {VB(1)}, v14 abid:1")
    A(f"v_permlane16_swap_b32 v{LS}, v{T0}")
    A(f"{smf} v[{CU+8}:{CU+11}], v[{A1}:{A1+3}], {VB(2)}, v14 abid:1")
    A(f"v_add_f32 v{M2}, v{LS}, v{T0}\nv_add_f32 v{LS}, v{LS}, v{T0}")
    A(f"{smf} v[{CU+12}:{CU+15}], v[{A1}:{A1+3}], {VB(3)}, v14 abid:1")
    A(f"v_permlane32_swap_b32 v{LS}, v{M2}")
    A(f"v_add_f32 v{LS}, v{LS}, v{M2}")
    fine(9)
    A("s_mov_b32 exec_lo, 0xffff\ns_mov_b32 exec_hi, 0xffff")
    A(f"ds_write2_b64 v15, v[{CU}:{CU+1}], v[{CU+4}:{CU+5}] offset0:0 offset1:1")
    A(f"ds_write_b64 v2, v[{MF}:{LS}]")
    A(f"ds_write2_b64 v15, v[{CU+8}:{CU+9}], v[{CU+12}:{CU+13}] offset0:2 offset1:3")
    A("s_mov_b64 exec, -1")
    fine(10)
    A("s_waitcnt lgkmcnt(0)")
    fine(11)
    A("s_barrier")
    stamp(2)
    A(f"s_cmp_ge_u32 {sW}, 6\ns_cbranch_scc1 L_kv_fin")
    A(f"ds_read_b64 v[52:53], v27")
    A(f"s_cmp_ge_u32 {sW}, 4\ns_cbranch_scc1 L_kv_ml")
    for j in range(4):
        A(f"ds_read2st64_b32 v[{CU+2*j}:{CU+2*j+1}], v26 offset0:{8*j} offset1:{8*j+4}")
    A("s_waitcnt lgkmcnt(%d)" % (0 if P["stamps"] and P["sm"] is None else 4))

    def alpha():
        A(f"v_max_f32_dpp v54, v52, v52 quad_perm:[1,0,3,2] {DPPALL}")
        A(f"v_max_f32_dpp v54, v54, v54 quad_perm:[2,3,0,1] {DPPALL}")
        A(f"v_max_f32_dpp v54, v54, v54 row_half_mirror {DPPALL}")
        A("v_sub_f32 v55, v52, v54\nv_exp_f32 v55, v55")
    alpha()
    A("s_waitcnt lgkmcnt(0)")
    for w in range(8):
        acc = 56 + (w % 3)
        op = "v_mul_f32_dpp" if w < 3 else "v_fmac_f32_dpp"
        A(f"{op} v{acc}, v55, v{CU+w} row_newbcast:{w} {DPPALL}")
    A("v_add_f32 v56, v56, v58\nv_add_f32 v56, v56, v57")
    A("v_cvt_pk_bf16_f32 v56, v56, v56\nv_min_u32 v56, 0xfffefffe, v56")
    store_mode(f"buffer_store_short v56, v12, {WS}, {sLO} offen")
    A("s_branch L_kv_fin")
    A.label("L_kv_ml")
    A("s_waitcnt lgkmcnt(0)")
    alpha()
    A("v_mul_f32 v55, v55, v53")
    A(f"v_add_f32_dpp v55, v55, v55 quad_perm:[1,0,3,2] {DPPALL}")
    A(f"v_add_f32_dpp v55, v55, v55 quad_perm:[2,3,0,1] {DPPALL}")
    A(f"v_add_f32_dpp v55, v55, v55 row_half_mirror {DPPALL}")
    A("v_min_u32 v54, -2, v54\nv_min_u32 v55, -2, v55\ns_mov_b64 exec, 1")
    store_mode(f"buffer_store_dwordx2 v[54:55], v13, {WS}, {sLO} offen")
    A("s_mov_b64 exec, -1")
    A.label("L_kv_fin")
    stamp(3)
    dump_stamps(0, 12 if P["fine"] else 5, sL, P["kvw"])
    A(f"s_cmp_eq_u32 {sL}, 3\ns_cbranch_scc1 L_kv_end")
    A(f"s_cmp_eq_u32 {sL}, 0\ns_cbranch_scc0 L_kv_swap")
    if kb == "end" or vb == "end":
        A("s_barrier")
    if kb == "end":
        k_loads(B1B)
    if vb == "end":
        v_loads(B2B)
    for r in range(0, 64, 2):
        A(f"v_mov_b64 v[{SV+r}:{SV+r+1}], v[{aK+r}:{aK+r+1}]")
    A("s_branch L_kv_next")
    A.label("L_kv_swap")
    for r in range(64):
        A(f"v_swap_b32 v{SV+r}, v{aK+r}")
    A.label("L_kv_next")
    A(f"s_add_u32 {sL}, {sL}, 1\ns_add_u32 {sLO}, {sLO}, {LST}")
    A.settle()
    A("s_branch L_kv_loop")
    A.label("L_kv_end")
    dump_stamps(12, 4, 0, 6)
    A("s_endpgm")

    A.label("L_w")
    XA, XB, OA, MLr, QI, D = 16, 20, 24, 28, 31, 32
    aQ, aO, gQ, gO, vQ, vO = 64, 96, 128, 160, 192, 224
    NCS, NCS2, XR = 12, 14, 10
    QF, GW, FC = 2, 7, 6
    sCG, sKH, sMODE, sISO, sQ0, sO0 = "s56", "s57", "s58", "s60", "s61", "s59"
    sE1, sE2 = "s[42:43]", "s[56:57]"
    A("s_load_dwordx2 s[28:29], s[0:1], 0\ns_load_dwordx2 s[4:5], s[0:1], 24\ns_load_dwordx2 s[8:9], s[0:1], 32")
    A("s_load_dwordx2 s[12:13], s[0:1], 64\ns_load_dwordx2 s[16:17], s[0:1], 72\ns_load_dwordx2 s[32:33], s[0:1], 80")
    for b in (B1A, B2A, B1B, B2B):
        srd(b, 4718592)
    srd(WS, 268435456)
    srd(DBG, 256)
    srd(XS, 2304)
    srd(OUT, 2304)
    A(f"s_lshr_b32 {sCG}, {sIDX}, 1\ns_and_b32 {sKH}, {sIDX}, 1")
    A(f"s_cmp_lt_u32 {sIDX}, 9\ns_cselect_b32 {sISO}, 1, 0")
    A("v_lshl_add_u32 v8, v4, 2, v6\nv_lshlrev_b32 v7, 13, v8\nv_lshl_add_u32 v7, v5, 4, v7")
    A(f"s_mul_i32 s46, {sKH}, {288*8192}\ns_lshl_b32 s47, {sK}, 10\ns_add_u32 s46, s46, s47\ns_lshl_b32 s47, {sCG}, 7\ns_add_u32 {sQ0}, s46, s47")
    A("v_mul_u32_u24 v8, 1152, v8\nv_lshl_add_u32 v8, v5, 4, v8")
    A(f"s_lshl_b32 s46, {sK}, 3\ns_add_u32 s46, s46, {sW}\ns_mul_i32 s46, s46, {64*1152}\ns_min_u32 s54, {sIDX}, 8\ns_lshl_b32 s55, s54, 7\ns_add_u32 {sO0}, s46, s55")
    A("v_and_b32 v54, 1, v4\nv_lshrrev_b32 v55, 1, v4")
    A("v_lshl_add_u32 v56, v6, 1, v55\nv_lshl_add_u32 v56, v5, 2, v56")
    A("v_mul_u32_u24 v30, 1152, v54\nv_lshl_add_u32 v30, v56, 2, v30\nv_add_u32 v30, s55, v30")
    A("s_waitcnt lgkmcnt(0)")
    l, l2 = lab("clr"), lab("noclr")
    A(f"s_cmp_eq_u32 {sISO}, 0\ns_cbranch_scc1 {l}")
    A(f"s_cmp_eq_u32 {sW}, {GW}\ns_cbranch_scc0 {l2}")
    flag_store()
    A(f"buffer_load_dword v41, v30, {XS}, 0 offen")
    A(f"s_branch {l2}")
    A.label(l)
    for r in range(60, 64):
        A(f"v_mov_b32 v{r}, -1")
    A(f"s_sub_u32 s46, {sIDX}, 9\ns_lshl_b32 s46, s46, 3\ns_add_u32 s46, s46, {sW}")
    A(f"s_lshl_b32 s47, s46, 10\ns_add_u32 s47, s47, {sGB}\nv_lshlrev_b32 v57, 4, v1\nv_lshlrev_b32 v58, 3, v1")
    A(f"buffer_store_dwordx4 v[60:63], v57, {WS}, s47 offen sc1")
    A(f"s_and_b32 s48, s46, 7\ns_add_u32 s48, s48, 56\ns_lshl_b32 s48, s48, 10\ns_add_u32 s48, s48, {sGB}")
    A(f"s_lshl_b32 s49, s46, 14\ns_lshl_b32 s50, {sK}, 9\ns_add_u32 s49, s49, s50\ns_add_u32 s49, s49, {XP}")
    a = lab("cx")
    A(f"s_cmp_lt_u32 s46, 36\ns_cbranch_scc0 {a}")
    A(f"buffer_store_dwordx2 v[60:61], v58, {WS}, s49 offen sc1")
    A(f"s_branch {l2}")
    A.label(a)
    A(f"s_cmp_ge_u32 s46, 48\ns_cbranch_scc0 {l2}")
    A(f"buffer_store_dwordx4 v[60:63], v57, {WS}, s48 offen sc1")
    A.label(l2)

    def wq_loads(buf):
        l = lab("noex")
        A(f"s_cmp_lt_u32 {sW}, 2\ns_cbranch_scc0 {l}")
        A(f"s_lshl_b32 s47, {sW}, 17\ns_add_u32 s47, s47, {sQ0}")
        for e in range(2):
            A(f"s_add_u32 s46, s47, {(256+2*e)*8192}")
            A(f"buffer_load_dwordx4 {r4(gQ+16+4*e)}, v7, {buf}, s46 offen {nt}")
        A.label(l)
        A(f"s_lshl_b32 s47, {sW}, 18\ns_add_u32 s47, s47, {sQ0}")
        for e in range(4):
            A(f"s_add_u32 s46, s47, {(2*(e>>1)+16*(e&1))*8192}")
            A(f"buffer_load_dwordx4 {r4(gQ+4*e)}, v7, {buf}, s46 offen {nt}")

    def wo_loads(buf):
        l = lab("nowo")
        A(f"s_cmp_eq_u32 {sISO}, 0\ns_cbranch_scc1 {l}")
        for e in range(8):
            row = 32 * (e & 1) + 16 * (e >> 2) + 2 * ((e >> 1) & 1)
            A(f"s_add_u32 s46, {sO0}, {row*1152}")
            A(f"buffer_load_dwordx4 {r4(gO+4*e)}, v8, {buf}, s46 offen {nt}")
        A.label(l)

    def prep1(src, d):
        A(f"v_mov_b32 v62, v{src}\nv_mov_b32 v63, v{src+1}")
        A(f"v_mov_b32_dpp v{src}, v{src+2} row_ror:8 row_mask:0xf bank_mask:0xc")
        A(f"v_mov_b32_dpp v{src+1}, v{src+3} row_ror:8 row_mask:0xf bank_mask:0xc")
        A(f"v_mov_b32_dpp v{src+2}, v62 row_ror:8 row_mask:0xf bank_mask:0x3")
        A(f"v_mov_b32_dpp v{src+3}, v63 row_ror:8 row_mask:0xf bank_mask:0x3")
        A(f"v_perm_b32 v{d[0]}, v{src+2}, v{src}, {sPE}\nv_perm_b32 v{d[1]}, v{src+2}, v{src}, {sPO}")
        A(f"v_perm_b32 v{d[2]}, v{src+3}, v{src+1}, {sPE}\nv_perm_b32 v{d[3]}, v{src+3}, v{src+1}, {sPO}")

    def wait_o(n, extra):
        if not extra:
            A(f"s_waitcnt vmcnt({n})")
            return
        a, b = lab("wa"), lab("wb")
        A(f"s_cmp_eq_u32 {sISO}, 0\ns_cbranch_scc1 {a}\ns_waitcnt vmcnt({n+extra})\ns_branch {b}")
        A.label(a)
        A(f"s_waitcnt vmcnt({n})")
        A.label(b)

    def wq_prep(extra):
        l = lab("noex")
        A(f"s_cmp_lt_u32 {sW}, 2\ns_cbranch_scc0 {l}")
        wait_o(4, extra)
        for e in range(2):
            prep1(gQ + 16 + 4 * e, [aQ + 16 + 4 * (t & 1) + 2 * e + (t >> 1) for t in range(4)])
        for j in range(4):
            A(f"v_permlane32_swap_b32 v{aQ+16+2*j}, v{aQ+17+2*j}")
        A.label(l)
        for e in range(4):
            wait_o(3 - e, extra)
            prep1(gQ + 4 * e, [aQ + 8 * (t & 1) + 4 * (t >> 1) + e for t in range(4)])

    def wo_prep(young):
        l = lab("nowo")
        A(f"s_cmp_eq_u32 {sISO}, 0\ns_cbranch_scc1 {l}")
        for e in range(8):
            A(f"s_waitcnt vmcnt({7-e+young})")
            prep1(gO + 4 * e, [aO + e + 8 * t for t in range(4)])
        A.label(l)

    woa, wob = P["woa_at"], P["wob_at"]
    wq_loads(B1A)
    if woa == "start":
        wo_loads(B2A)
    stamp(13)
    A(f"s_mov_b32 {sPE}, 0x05040100\ns_mov_b32 {sPO}, 0x07060302")
    A(f"s_bfe_u32 s46, {sCG}, 0x10002\ns_lshl_b32 s46, s46, 11\ns_and_b32 s47, {sCG}, 1\ns_lshl_b32 s47, s47, 7\ns_add_u32 s46, s46, s47")
    A(f"s_lshl_b32 s47, {sKH}, 6\ns_add_u32 s46, s46, s47\ns_bfe_u32 s47, {sCG}, 0x10001\ns_lshl_b32 s47, s47, 5\ns_add_u32 s46, s46, s47\ns_add_u32 s46, s46, {sGB}")
    A("v_and_b32 v52, 1, v1\nv_lshl_add_u32 v2, v52, 1, v6\nv_lshlrev_b32 v2, 2, v2\nv_lshl_add_u32 v2, v55, 4, v2\nv_lshrrev_b32 v52, 1, v5")
    A("v_lshl_add_u32 v2, v52, 8, v2\nv_lshl_add_u32 v2, v54, 10, v2\nv_add_u32 v2, s46, v2")
    A(f"s_lshl_b32 s46, s54, 16\ns_add_u32 s46, s46, {XP}\nv_lshlrev_b32 v49, 3, v1\nv_add_u32 v49, s46, v49")
    A(f"s_add_u32 s46, {sGB}, {XM}\nv_add_u32 v50, s46, v30")
    A(f"s_lshl_b32 s46, s54, 4\ns_add_u32 s46, s46, {sGB}\ns_add_u32 s46, s46, {SM}")
    A("v_lshlrev_b32 v51, 8, v54\nv_add_u32 v51, s46, v51")
    A("v_bfe_u32 v52, v1, 2, 1\nv_bfe_u32 v53, v1, 1, 1\nv_mul_u32_u24 v57, 1152, v52")
    A(f"s_mul_i32 s47, {sKH}, 576\ns_add_u32 s46, {sGB}, s47\ns_add_u32 s46, s46, {XM}")
    A(f"s_lshl_b32 s47, {sW}, 6\ns_add_u32 s47, s47, s46")
    A("v_lshl_add_u32 v9, v54, 4, v57\nv_lshl_add_u32 v9, v53, 5, v9\nv_add_u32 v9, s47, v9")
    A(f"s_lshl_b32 s47, {sW}, 5\ns_add_u32 s47, s47, s46\ns_add_u32 s47, s47, 512")
    A("v_lshl_add_u32 v48, v53, 4, v57\nv_add_u32 v48, s47, v48")
    A(f"s_add_u32 s46, {sGB}, {SM}\nv_lshlrev_b32 v58, 8, v54\nv_lshl_add_u32 v58, v3, 4, v58\nv_add_u32 v58, s46, v58")
    A(f"s_cmp_eq_u32 {sW}, {QF}\ns_cselect_b64 vcc, -1, 0\nv_cndmask_b32 v48, v48, v58, vcc")
    A("s_mov_b32 s42, 0x00550055\ns_mov_b32 s43, 0x55005500")
    A("s_mov_b32 s56, 0x55000055\ns_cmov_b32 s56, 0x01ff01ff\ns_mov_b32 s57, 0xaa0000aa\ns_cmov_b32 s57, 0x01ff01ff")
    A(f"v_mul_u32_u24 v{QI}, 0xaaaa, v53\nv_add_u32 v{QI}, 0x4444, v{QI}")
    A(f"s_lshl_b32 s46, {sW}, 10\ns_add_u32 s46, s46, {sGB}\ns_add_u32 s46, s46, {OM}")
    A("v_lshlrev_b32 v42, 4, v1\nv_add_u32 v42, s46, v42")
    A(f"s_lshr_b32 s46, {sW}, 1\ns_lshl_b32 s46, s46, 6\ns_add_u32 s46, s46, {sGB}\ns_add_u32 s46, s46, {ML}")
    A("v_and_b32 v43, 3, v1\nv_lshlrev_b32 v43, 3, v43\nv_lshl_add_u32 v43, v54, 5, v43\nv_add_u32 v43, s46, v43")
    A("v_mul_u32_u24 v44, 0xaaaa, v6\nv_add_u32 v44, 0x4444, v44")
    A(f"s_lshl_b32 s46, {sW}, 9\nv_mov_b32 v3, v42\nv_mov_b32 v4, v43\nv_mov_b32 v5, v44\nv_lshlrev_b32 v0, 3, v1\nv_add_u32 v6, s46, v0")
    for r in list(range(XA, XA + 8, 2)) + [MLr]:
        A(f"v_mov_b64 {r2(r)}, 0")
    A("s_mov_b32 s98, 0x000f000f\ns_mov_b32 s99, 0x000f000f")
    A(f"s_mov_b32 {sL}, 0\ns_mov_b32 {sLO}, 0\ns_mov_b32 {sLOC}, 0")

    def publish(so):
        A(f"v_cvt_pk_bf16_f32 v52, v{XR}, v{XR+1}\nv_add_f32 v54, v{XR}, v{XR+1}\nv_min_u32 v52, -2, v52")
        store_mode(f"buffer_store_dword v52, v50, {WS}, {so} offen")
        A(f"v_mul_f32 v55, v{XR}, v{XR}\nv_add_f32_dpp v54, v54, v54 quad_perm:[1,0,3,2] {DPPALL}\nv_fmac_f32 v55, v{XR+1}, v{XR+1}")
        A(f"v_add_f32_dpp v54, v54, v54 quad_perm:[2,3,0,1] {DPPALL}")
        A(f"v_add_f32_dpp v55, v55, v55 quad_perm:[1,0,3,2] {DPPALL}")
        A(f"v_add_f32_dpp v54, v54, v54 row_half_mirror {DPPALL}")
        A(f"v_add_f32_dpp v55, v55, v55 quad_perm:[2,3,0,1] {DPPALL}")
        A(f"v_add_f32_dpp v56, v54, v54 row_mirror {DPPALL}\nv_add_f32_dpp v54, v54, v54 row_mirror {DPPALL}")
        A(f"v_add_f32_dpp v55, v55, v55 row_half_mirror {DPPALL}")
        A("v_permlane32_swap_b32 v54, v56")
        A(f"v_add_f32_dpp v57, v55, v55 row_mirror {DPPALL}\nv_add_f32_dpp v55, v55, v55 row_mirror {DPPALL}")
        A("v_add_f32 v54, v54, v56")
        A("v_permlane32_swap_b32 v55, v57")
        A("v_add_f32 v55, v55, v57\nv_min_u32 v56, -2, v54\nv_min_u32 v57, -2, v55\nv_mov_b64 v[58:59], v[56:57]")
        A("s_mov_b64 exec, 0x10001")
        store_mode(f"buffer_store_dwordx4 v[56:59], v51, {WS}, {so} offen")
        A("s_mov_b64 exec, -1")

    ex0 = 8 if woa == "start" else 0
    l = lab("clf")
    A(f"s_cmp_eq_u32 {sISO}, 0\ns_cbranch_scc0 {l}")
    A(f"s_waitcnt vmcnt(4)\ns_barrier\ns_cmp_eq_u32 {sW}, {GW}\ns_cbranch_scc0 {l}")
    flag_store()
    A.label(l)
    wq_prep(ex0)
    stamp(14)
    l = lab("w6")
    A(f"s_cmp_eq_u32 {sW}, {FC}\ns_cbranch_scc0 {l}")
    group_flags()
    stamp(15)
    A.label(l)

    def zeroD(n):
        for r in range(D, D + n, 2):
            A(f"v_mov_b64 {r2(r)}, 0")

    def colsum(mode):
        zeroD(8)
        A(f"v_mov_b64 {r2(NCS)}, 0\nv_mov_b32 v52, 0x3f803f80\ns_mov_b64 exec, {sE1}")
        for r in range(4):
            A(f"v_mov_b32 v{XA+r}, v52")
        A(f"s_mov_b64 exec, {sE2}")
        for r in range(4):
            A(f"v_mov_b32 v{XB+r}, v52")
        A(f"s_mov_b64 exec, -1\ns_mov_b32 {sMODE}, {mode}")
        A.settle()
        A("s_branch L_w_q2")
        A.label(f"L_w_cs{mode}")
        A(f"s_mov_b32 {sMODE}, 0\ns_barrier")

    def final_sum(off, init=None):
        for j in range(4):
            A(f"ds_read2st64_b64 {r4(D+4*j)}, v0 offset0:{off+2*j} offset1:{off+2*j+1}")
        w = (lambda n: A("s_waitcnt lgkmcnt(%d)" % (0 if P["stamps"] and P["sm"] is None else n)))
        pa = lambda d, a, b: A(f"v_pk_add_f32 {r2(d)}, {r2(a)}, {r2(b)}")
        if init:
            init()
            w(3)
            pa(D, D, 56)
        w(2)
        pa(D, D, D + 2)
        pa(D + 4, D + 4, D + 6)
        w(1)
        pa(D + 8, D + 8, D + 10)
        pa(D, D, D + 4)
        w(0)
        pa(D + 12, D + 12, D + 14)
        pa(D, D, D + 8)
        pa(52, D, D + 12)

    colsum(1)
    read_loc()
    l = lab("pub0")
    A(f"s_cmp_eq_u32 {sW}, {GW}\ns_cbranch_scc0 {l}\ns_cmp_eq_u32 {sISO}, 0\ns_cbranch_scc1 {l}")
    A(f"v_lshlrev_b32 v{XR}, 16, v41\nv_and_b32 v{XR+1}, 0xffff0000, v41")
    publish(sLO)
    A.label(l)
    if woa == "cs":
        wo_loads(B2A)
    A.label("L_w_loop")
    zeroD(8)
    stamp(0)
    xl = f"buffer_load_dwordx4 {r4(XA)}, v9, {WS}, {sLO} offen sc1"
    A(f"s_cmp_le_u32 {sW}, 2\ns_cbranch_scc1 L_w_p2")
    A(f"s_mov_b64 exec, {sE1}")
    poll([xl], list(range(XA, XA + 4)), P["dx"], 52, P["sleep_x"])
    A("s_mov_b64 exec, -1\ns_branch L_w_q")
    A.label("L_w_p2")
    poll([f"s_mov_b64 exec, {sE1}\n" + xl, f"s_mov_b64 exec, {sE2}\nbuffer_load_dwordx4 {r4(XB)}, v48, {WS}, {sLO} offen sc1\ns_mov_b64 exec, -1"],
         list(range(XA, XA + 8)), P["dx"], 52, P["sleep_x"])
    stamp(1)
    A.label("L_w_q2")
    A(f"s_cmp_ge_u32 {sW}, 2\ns_cbranch_scc1 L_w_q")
    A(f"{smf} {r4(D)}, {r4(XB)}, {r8(aQ+16)}, v{QI}")
    A.label("L_w_q")
    A(f"{smf} {r4(D+4)}, {r4(XA)}, {r8(aQ+8)}, v{QI}")
    A(f"v_add_f32_dpp v54, v{XB}, v{XB} quad_perm:[1,0,3,2] {DPPALL}")
    A(f"{smf} {r4(D)}, {r4(XA)}, {r8(aQ)}, v{QI}")
    for d in ("quad_perm:[2,3,0,1]", "row_half_mirror", "row_mirror"):
        A(f"v_add_f32_dpp v54, v54, v54 {d} {DPPALL}")
    A(f"v_add_f32 v55, v{D+4}, v{D+6}")
    A(f"v_pk_add_f32 v[52:53], {r2(D)}, {r2(D+2)}\nv_add_f32 v53, v53, v55")
    fine(8)
    A("ds_write_b64 v6, v[52:53]\ns_waitcnt lgkmcnt(0)\ns_barrier")
    fine(9)
    A(f"s_cmp_eq_u32 {sW}, {QF}\ns_cbranch_scc0 L_w_qd")
    final_sum(0, lambda: A(f"v_mul_f32 v56, v54, v{NCS}\nv_mul_f32 v57, v54, v{NCS+1}"))
    A(f"s_cmp_eq_u32 {sMODE}, 0\ns_cbranch_scc0 L_w_qcs")
    A("v_cvt_pk_bf16_f32 v52, v52, v53\nv_min_u32 v52, -2, v52")
    store_mode(f"buffer_store_dword v52, v2, {WS}, {sLO} offen")
    A("s_branch L_w_qh")
    A.label("L_w_qcs")
    A(f"v_mul_f32 v{NCS}, {f2u(-1/576.0):#x}, v52\nv_mul_f32 v{NCS+1}, {f2u(-1/576.0):#x}, v53")
    A.label("L_w_qd")
    A(f"s_cmp_eq_u32 {sMODE}, 1\ns_cbranch_scc1 L_w_cs1\ns_cmp_eq_u32 {sMODE}, 2\ns_cbranch_scc1 L_w_cs2")
    A.label("L_w_qh")
    stamp(2)
    dump_stamps(0, 3, sL, QF)
    if P["fine"]:
        dump_stamps(8, 2, sL, QF, 8)

    def swap(a, b, n):
        for r in range(n):
            A(f"v_swap_b32 v{a+r}, v{b+r}")

    def copy(dst, src, n):
        for r in range(0, n, 2):
            A(f"v_mov_b64 v[{dst+r}:{dst+r+1}], v[{src+r}:{src+r+1}]")

    A(f"s_cmp_eq_u32 {sL}, 0\ns_cbranch_scc0 L_w_h1")
    A("s_barrier")
    if woa == "q0":
        wo_loads(B2A)
    wq_loads(B1B)
    copy(vQ, aQ, 24)
    copy(NCS2, NCS, 2)
    wo_prep(4)
    if wob == "early":
        wo_loads(B2B)
    wq_prep(8 if wob == "early" else 0)
    colsum(2)
    top, out = lab("flag"), lab("flagd")
    A(f"s_cmp_eq_u32 {sW}, {GW}\ns_cbranch_scc0 L_w_o\ns_cmp_eq_u32 {sISO}, 0\ns_cbranch_scc1 L_w_o")
    A(f"s_mov_b32 {sSPIN}, {P['spin']}\nv_lshlrev_b32 v52, 2, v1\ns_mov_b32 s47, 0x80808080")
    A.label(top)
    A(f"buffer_load_dword v53, v52, {DBG}, 0 offen sc1")
    A(f"s_sub_u32 {sSPIN}, {sSPIN}, 1\ns_cbranch_scc1 L_w_o")
    A(f"s_waitcnt vmcnt(0)\nv_and_b32 v54, s47, v53\nv_cmp_ne_u32 vcc, s47, v54\ns_cbranch_vccnz {top}")
    A("s_branch L_w_o")
    A.label("L_w_h1")
    A(f"s_cmp_eq_u32 {sL}, 1\ns_cbranch_scc0 L_w_h2")
    if wob == "q1":
        A("s_barrier")
        wo_loads(B2B)
    copy(vO, aO, 32)
    swap(aQ, vQ, 24)
    swap(NCS, NCS2, 2)
    wo_prep(0)
    A("s_branch L_w_o")
    A.label("L_w_h2")
    swap(aO, vO, 32)
    swap(aQ, vQ, 24)
    swap(NCS, NCS2, 2)
    A.label("L_w_o")
    A(f"s_cmp_eq_u32 {sISO}, 0\ns_cbranch_scc1 L_w_od")
    zeroD(16)
    stamp(3)
    poll([f"buffer_load_dwordx4 {r4(OA)}, v3, {WS}, {sLO} offen sc1", f"s_mov_b64 exec, s[98:99]\nbuffer_load_dwordx2 {r2(MLr)}, v4, {WS}, {sLO} offen sc1\ns_mov_b64 exec, -1"],
         list(range(OA, OA + 6)), P["do"], 52, P["sleep_o"])
    stamp(4)
    OB = lambda t: r8(aO + 8 * t)
    A(f"{smf} {r4(D)}, {r4(OA)}, {OB(0)}, v5")
    A(f"v_max_f32_dpp v56, v{MLr}, v{MLr} quad_perm:[1,0,3,2] {DPPALL}")
    A(f"{smf} {r4(D+8)}, {r4(OA)}, {OB(2)}, v5")
    A(f"v_max_f32_dpp v56, v56, v56 quad_perm:[2,3,0,1] {DPPALL}")
    A(f"v_sub_f32 v56, v{MLr}, v56")
    A(f"{smf} {r4(D+4)}, {r4(OA)}, {OB(1)}, v5")
    A("v_exp_f32 v56, v56")
    A(f"{smf} {r4(D+12)}, {r4(OA)}, {OB(3)}, v5")
    A(f"v_mul_f32 v57, v56, v{MLr+1}")
    A(f"v_add_f32_dpp v57, v57, v57 quad_perm:[1,0,3,2] {DPPALL}")
    A(f"v_add_f32_dpp v57, v57, v57 quad_perm:[2,3,0,1] {DPPALL}")
    A("v_rcp_f32 v57, v57")
    A("v_mul_f32 v56, v56, v57")
    for s_ in range(4):
        op = "v_mul_f32_dpp" if s_ == 0 else "v_fmac_f32_dpp"
        for dst, src in ((52, D), (54, D + 8), (53, D + 4), (55, D + 12)):
            A(f"{op} v{dst}, v56, v{src+s_} row_newbcast:{s_} {DPPALL}")
    A("v_permlane32_swap_b32 v52, v54")
    A("v_permlane32_swap_b32 v53, v55")
    A("v_pk_add_f32 v[52:53], v[52:53], v[54:55]")
    fine(10)
    A("ds_write_b64 v6, v[52:53] offset:4096\ns_waitcnt lgkmcnt(0)\ns_barrier")
    fine(11)
    A(f"s_cmp_eq_u32 {sW}, {GW}\ns_cbranch_scc0 L_w_od")
    A(f"s_lshl_b32 s47, {sK}, 9\ns_add_u32 s47, s47, {sLO}\ns_mov_b32 s46, {f2u(1e37):#x}")
    final_sum(8)
    A("v_med3_f32 v52, v52, s46, -s46\nv_med3_f32 v53, v53, s46, -s46")
    A(f"buffer_store_dwordx2 v[52:53], v49, {WS}, s47 offen sc1")
    stamp(5)
    l = lab("gat")
    A(f"s_cmp_eq_u32 {sL}, 3\ns_cbranch_scc0 {l}\ns_cmp_eq_u32 {sK}, 0\ns_cbranch_scc0 L_w_od")
    A.label(l)

    def gcheck():
        pa = lambda d, a, b: A(f"v_pk_add_f32 {r2(d)}, {r2(a)}, {r2(b)}")
        pa(52, gQ, gQ + 2)
        pa(54, gQ + 4, gQ + 6)
        pa(56, gQ + 8, gQ + 10)
        pa(58, gQ + 12, gQ + 14)
        pa(52, 52, XR)
        pa(54, 54, 56)
        pa(52, 52, 58)
        pa(52, 52, 54)
        A("v_cmp_u_f32 vcc, v52, v53")
    if P["pre_g"]:
        A(f"s_sleep {P['pre_g']}")
    poll([f"buffer_load_dwordx2 {r2(gQ+2*p)}, v49, {WS}, {sLO} offen offset:{512*p} sc1" for p in range(8)], None, P["dg"], 52, 0, gcheck, P["stag_g"])
    stamp(6)
    A(f"v_med3_f32 v{XR}, v52, s46, -s46\nv_med3_f32 v{XR+1}, v53, s46, -s46")
    A(f"s_cmp_eq_u32 {sL}, 3\ns_cbranch_scc1 L_w_out")
    A(f"s_add_u32 s47, {sLO}, {LST}")
    publish("s47")
    stamp(7)
    A.label("L_w_od")
    dump_stamps(3, 5, sL, GW, 3)
    if P["fine"]:
        dump_stamps(10, 2, sL, GW, 10)
    A(f"s_cmp_eq_u32 {sL}, 3\ns_cbranch_scc1 L_w_end")
    A(f"s_add_u32 {sL}, {sL}, 1\ns_add_u32 {sLO}, {sLO}, {LST}")
    A.settle()
    A("s_branch L_w_loop")
    A.label("L_w_out")
    A(f"v_cvt_pk_bf16_f32 v52, v52, v53")
    A(f"buffer_store_dword v52, v30, {OUT}, 0 offen")
    stamp(7)
    dump_stamps(3, 5, sL, GW, 3)
    A.label("L_w_end")
    dump_stamps(12, 4, 0, FC)
    A.label("L_end")
    A("s_endpgm")
    A.raw(f""".section .rodata,"a"
.p2align 6
.amdhsa_kernel {N}_kernel
  .amdhsa_next_free_vgpr 256
  .amdhsa_next_free_sgpr 100
  .amdhsa_accum_offset 256
  .amdhsa_group_segment_fixed_size 0
  .amdhsa_kernarg_size 104
  .amdhsa_user_sgpr_count 2
  .amdhsa_user_sgpr_kernarg_segment_ptr 1
  .amdhsa_system_sgpr_workgroup_id_x 1
.end_amdhsa_kernel""")
    return A.text()


if __name__ == "__main__":
    out = sys.argv[1]
    kw = {}
    for a in sys.argv[2:]:
        k, v = a.split("=")
        try:
            v = eval(v)
        except Exception:
            pass
        kw[k] = v
    open(out, "w").write(gen(**kw))
```

```python
import re

TRANS = ("v_exp_f32", "v_log_f32", "v_rcp_f32", "v_rsq_f32", "v_sqrt_f32")
RW_DST = ("v_fmac_", "v_dot2c_", "v_smfmac_", "v_pk_fmac")


def _regs(tok, pfx):
    tok = tok.strip().lstrip("-").replace("|", "")
    m = re.fullmatch(r"abs\((.*)\)", tok)
    if m:
        tok = m.group(1)
    m = re.fullmatch(pfx + r"(\d+)", tok)
    if m:
        return [int(m.group(1))]
    m = re.fullmatch(pfx + r"\[(\d+):(\d+)\]", tok)
    if m:
        return list(range(int(m.group(1)), int(m.group(2)) + 1))
    return []


def _sregs(tok):
    t = tok.strip()
    if t == "vcc":
        return ["vcc"]
    return _regs(t, "s")


class Asm:
    def __init__(self, strict_dpp=True):
        self.lines = []
        self.pos = 0
        self.valu_w = {}
        self.trans_w = {}
        self.dot_w = {}
        self.mfma_w = {}
        self.sgpr_w = {}
        self.store_r = {}
        self.strict_dpp = strict_dpp
        self.nops = 0

    def raw(self, s):
        self.lines.append(s)

    def label(self, l):
        self.lines.append(l + ":")

    def c(self, s):
        self.lines.append("    ; " + s)

    def nop(self, n):
        while n > 0:
            k = min(n, 16)
            self.lines.append(f"    s_nop {k-1}")
            self.pos += k
            self.nops += k
            n -= k

    def settle(self):
        need = 0
        for r, (p, _, _) in self.mfma_w.items():
            need = max(need, 8 - (self.pos - p))
        for d, w in ((self.valu_w, 2), (self.sgpr_w, 5), (self.store_r, 2), (self.dot_w, 3)):
            for r, p in d.items():
                need = max(need, w - (self.pos - p))
        if need > 0:
            self.nop(need)

    def snap(self):
        return (self.pos, dict(self.valu_w), dict(self.trans_w), dict(self.dot_w), dict(self.mfma_w), dict(self.sgpr_w), dict(self.store_r))

    def restore(self, st):
        self.pos, self.valu_w, self.trans_w, self.dot_w, self.mfma_w, self.sgpr_w, self.store_r = st

    def mark_done(self, regs, n, extra=0):
        pass

    def __call__(self, text):
        for ln in text.split("\n"):
            ln = ln.strip()
            if ln:
                self._one(ln)

    def _one(self, ln):
        if ln.endswith(":"):
            self.lines.append(ln)
            return
        if ln.startswith(";"):
            self.lines.append("    " + ln)
            return
        body = ln.split(";")[0].strip()
        parts = body.split(None, 1)
        op = parts[0]
        rest = parts[1] if len(parts) > 1 else ""
        toks = []
        for t in re.split(r",(?![^\[]*\])", rest):
            t = t.strip()
            toks.append(t.split()[0] if t else t)
        need = 0

        def chk(d, regs, w):
            nonlocal need
            for r in regs:
                if r in d:
                    p = d[r][0] if isinstance(d[r], tuple) else d[r]
                    need = max(need, w - (self.pos - p))

        is_mfma = op.startswith("v_mfma") or op.startswith("v_smfmac")
        is_valu = op.startswith("v_") and not is_mfma
        is_vmem = op.startswith(("buffer_", "global_"))
        is_ds = op.startswith("ds_")
        if op == "s_nop":
            self.lines.append("    " + ln)
            self.pos += int(toks[0], 0) + 1
            return
        if is_mfma:
            d = _regs(toks[0], "v")
            ab = _regs(toks[1], "v") + _regs(toks[2], "v")
            if op.startswith("v_smfmac"):
                ab += _regs(toks[3], "v")
                cin = d
            else:
                cin = _regs(toks[3], "v")
            chk(self.valu_w, ab + cin, 2)
            chk(self.dot_w, ab + cin, 3)
            chk(self.mfma_w, ab, 8)
            for r in cin:
                if r in self.mfma_w:
                    p, f, n = self.mfma_w[r]
                    if not (f == cin[0] and n == len(cin)):
                        need = max(need, 6 - (self.pos - p))
            if not cin:
                chk(self.mfma_w, d, 8)
            if need > 0:
                self.nop(need)
            self.lines.append("    " + ln)
            self.pos += 1
            for r in d:
                self.mfma_w[r] = (self.pos, d[0], len(d))
                self.valu_w.pop(r, None)
            return
        if is_valu:
            dpp = any(k in body for k in ("quad_perm", "row_shl", "row_shr", "row_ror", "row_mirror", "row_half_mirror", "row_newbcast", "row_bcast"))
            both = op.startswith(("v_permlane16_swap", "v_permlane32_swap", "v_swap_b32"))
            sdst = []
            if op.startswith("v_cmp") or op.startswith(("v_readfirstlane", "v_readlane")):
                dst = []
                sdst = _sregs(toks[0])
                srcs = toks[1:]
            elif both:
                dst = _regs(toks[0], "v") + _regs(toks[1], "v")
                srcs = toks[:2]
            else:
                dst = _regs(toks[0], "v")
                srcs = toks[1:]
                if "_co_" in op:
                    sdst = _sregs(toks[1])
                    srcs = toks[2:]
            src = [r for t in srcs for r in _regs(t, "v")]
            ssrc = [r for t in srcs for r in _sregs(t)]
            acc = dst if op.startswith(RW_DST) else []
            chk(self.mfma_w, src + dst, 8)
            chk(self.store_r, dst, 2)
            chk(self.sgpr_w, ssrc, 4 if op.startswith(("v_readlane", "v_writelane")) else 2)
            if op not in TRANS:
                chk(self.trans_w, src + acc, 1)
            if op.startswith("v_dot2c"):
                chk(self.dot_w, src, 3)
            else:
                chk(self.dot_w, src + dst, 3)
            if dpp:
                if self.strict_dpp:
                    chk(self.valu_w, src + acc, 2)
                else:
                    chk(self.valu_w, _regs(srcs[0], "v"), 2)
            if op.startswith("v_permlane"):
                chk(self.valu_w, src, 2)
            if op.startswith(("v_readfirstlane", "v_readlane")):
                chk(self.valu_w, src, 1)
            if need > 0:
                self.nop(need)
            self.lines.append("    " + ln)
            self.pos += 1
            for r in dst:
                self.valu_w[r] = self.pos
                self.mfma_w.pop(r, None)
                self.trans_w.pop(r, None)
                self.dot_w.pop(r, None)
                if op in TRANS:
                    self.trans_w[r] = self.pos
                if op.startswith("v_dot2"):
                    self.dot_w[r] = self.pos
            for r in sdst:
                self.sgpr_w[r] = self.pos
            return
        if is_vmem or is_ds:
            allv = [r for t in toks for r in _regs(t, "v")]
            alls = [r for t in toks for r in _sregs(t)]
            chk(self.mfma_w, allv, 8)
            chk(self.dot_w, allv, 3)
            if is_vmem:
                chk(self.sgpr_w, alls, 5)
            if "load" in op or "ds_read" in op:
                chk(self.store_r, _regs(toks[0], "v"), 1)
            if need > 0:
                self.nop(need)
            self.lines.append("    " + ln)
            self.pos += 1
            if is_vmem and "store" in op and ("x3" in op or "x4" in op):
                dt = toks[0] if op.startswith("buffer_") else toks[1]
                for r in _regs(dt, "v"):
                    self.store_r[r] = self.pos
            return
        self.lines.append("    " + ln)
        self.pos += 1

    def text(self):
        return "\n".join(self.lines) + "\n"
```

```python
import sys, struct, math
from asmlib import Asm

N = "interleave_layers__sliding_block_cached__sliding_block_cached__decode"
LST = 0x4000
QM, OM, XM, XE, SM, ML = 0x0, 0x1000, 0x3000, 0x3800, 0x3900, 0x3c00
SMB = 0x140
XP, XPL = 0x100000, 0xc000
QM2 = 0x180000
TAB = XP + 40 * 1024
XR, XRL = 0x200000, 0x2000
STAMP_OFF = 128 << 20
NST = 64
DPPALL = "row_mask:0xf bank_mask:0xf"
WO, WOX, RED = 36864, 102400, 110592
MISC = 131072
PB, MB, LOCW, VF = MISC, MISC + 1024, MISC + 1536, MISC + 1552
LDS = 133120


def f2u(x):
    return struct.unpack("<I", struct.pack("<f", x))[0]


DEF = dict(nt="nt", stamps=False, spin=0x20000, force_sc1=False, sleep_s=2, sleep_f=8, sleep_x=0, sleep_q=0, sleep_m=0, sleep_o=0,
           dg=1, stag_g=0, pre_g=9, kb1=4, woa1=10, wob1=0, wob2=12, hold=True, d0=3, sl0=8, d1=3, sl1=2, sleep_t=8, rounds=64, pf=True, cgx=4, prio_v=1, prio_o=1,
           cyc=False, strict=True)


def gen(**kw):
    P = dict(DEF)
    P.update(kw)
    nt = P["nt"]
    A = Asm(strict_dpp=P["strict"])
    uid = [0]
    tails = []

    def lab(s):
        uid[0] += 1
        return f"L_{s}_{uid[0]}"

    A.raw(f"""; persistent fused decode kernel: 8 groups x (16 weight WGs + 16 KV WGs), generated by my own script
; @launch grid=(256,1,1) block=(512,1,1) lds={LDS}
.amdgcn_target "amdgcn-amd-amdhsa--gfx950"
.text
.globl {N}_kernel
.p2align 8
.type {N}_kernel,@function
{N}_kernel:""")
    sW, sK, sIDX, sL, sLO, sLOC, sSPIN, sXPO, sXRO = "s3", "s32", "s33", "s34", "s35", "s36", "s37", "s38", "s39"
    SA, SB, XS, PUB, WS, DBG, OUT = "s[4:7]", "s[8:11]", "s[12:15]", "s[16:19]", "s[20:23]", "s[24:27]", "s[28:31]"
    pAx, pAk, pAv, pAq, pAo, pBk, pBv, pBq, pBo, pOut, pDbg = (f"s[{r}:{r+1}]" for r in (48, 50, 52, 54, 56, 60, 62, 40, 42, 44, 46))
    smf = "v_smfmac_f32_16x16x64_bf16"
    r2 = lambda r: f"v[{r}:{r+1}]"
    r4 = lambda r: f"v[{r}:{r+3}]"
    r8 = lambda r: f"v[{r}:{r+7}]"
    HIST = 255
    T = 48

    def stamp(j):
        if P["stamps"]:
            A(f"{'s_memtime' if P['cyc'] else 's_memrealtime'} s[{64+2*j}:{65+2*j}]")

    def keep(js, layer=True):
        if not P["stamps"]:
            return
        A("s_waitcnt lgkmcnt(0)")
        if layer:
            A(f"s_mul_i32 s98, {sL}, 12")
        for j in js:
            if layer:
                A(f"s_add_u32 m0, s98, {4+j}\ns_nop 0\nv_writelane_b32 v{HIST}, s{64+2*j}, m0")
            else:
                A(f"v_writelane_b32 v{HIST}, s{64+2*j}, {j-12}")

    def dump(wave, js, start):
        if not P["stamps"]:
            return
        m = 0
        for L in range(4):
            for j in js:
                m |= 1 << (4 + 12 * L + j)
        for j in start:
            m |= 1 << (j - 12)
        l = lab("nost")
        A(f"s_cmp_eq_u32 {sW}, {wave}\ns_cbranch_scc0 {l}")
        A(f"s_mul_i32 s98, s2, {NST*8}\ns_add_u32 s98, s98, {STAMP_OFF}")
        A(f"v_mbcnt_lo_u32_b32 v{T}, -1, 0\nv_mbcnt_hi_u32_b32 v{T}, -1, v{T}\nv_lshlrev_b32 v{T}, 3, v{T}")
        A(f"v_mov_b32 v{T+2}, v{HIST}\nv_mov_b32 v{T+3}, 0")
        A(f"s_mov_b32 exec_lo, {m & 0xffffffff:#x}\ns_mov_b32 exec_hi, {m >> 32:#x}")
        A(f"buffer_store_dwordx2 {r2(T+2)}, v{T}, {WS}, s98 offen")
        A("s_mov_b64 exec, -1")
        A.label(l)

    def srd(b, nrec):
        r = int(b[2:].split(":")[0])
        A(f"s_mov_b32 s{r+2}, {nrec}\ns_mov_b32 s{r+3}, 0x20000")

    def lo(b):
        r = int(b[2:].split(":")[0])
        return f"s[{r}:{r+1}]"

    def loc_test():
        if not P["force_sc1"]:
            A(f"s_cmp_eq_u32 {sLOC}, 0")

    def store_mode(instr):
        if P["force_sc1"]:
            A(instr + " sc1")
            return
        a, b = lab("sg"), lab("se")
        A(f"s_cbranch_scc1 {a}")
        n0 = A.nops
        A(instr)
        assert A.nops == n0
        A.label(b)
        tails.append(f"{a}:\n    {instr} sc1\n    s_branch {b}")

    def poll(loads, check, depth=1, sleep=0, stag=0, top=None, pre=None, alt=None):
        n = len(loads)
        top = top or lab("poll")
        done = lab("pdone")
        if pre:
            check()
            A(f"s_cbranch_vccz {done}")
        if alt:
            A(f"s_mov_b32 s99, {P['rounds']}")
        for _ in range(depth - 1):
            for l in loads:
                A(l)
            if stag:
                A(f"s_sleep {stag}")
        A.label(top)
        for l in loads:
            A(l)
        A(f"s_sub_u32 {sSPIN}, {sSPIN}, 1\ns_cmp_lt_i32 {sSPIN}, 0\ns_cbranch_scc1 {done}")
        if alt:
            A("s_sub_u32 s99, s99, 1")
            for a, b in alt:
                A(f"s_cselect_b32 {a}, {b}, {a}")
        if sleep:
            A(f"s_sleep {sleep}")
        A(f"s_waitcnt vmcnt({n*(depth-1)})")
        check()
        A(f"s_cbranch_vccnz {top}")
        A.label(done)

    def chk(regs):
        def f():
            rs = [f"v{r}" for r in regs]
            while len(rs) > 1:
                if len(rs) >= 3:
                    A(f"v_max3_u32 v{T}, {rs[0]}, {rs[1]}, {rs[2]}")
                    rs = rs[3:] + [f"v{T}"]
                else:
                    A(f"v_max_u32 v{T}, {rs[0]}, {rs[1]}")
                    rs = [f"v{T}"]
            A(f"v_cmp_eq_u32 vcc, -1, {rs[0]}")
        return f

    def retry(target):
        a, b = lab("rt"), lab("rc")
        A(f"s_cbranch_vccnz {a}")
        A.label(b)
        tails.append(f"{a}:\n    s_sub_u32 {sSPIN}, {sSPIN}, 1\n    s_cmp_lt_i32 {sSPIN}, 0\n    s_cbranch_scc1 {b}\n    s_nop 15\n    s_branch {target}")

    def xcc(r):
        A(f"s_getreg_b32 {r}, hwreg(HW_REG_XCC_ID, 0, 4)")

    def tab_store():
        xcc("s96")
        A(f"s_lshr_b32 s97, {sIDX}, 4\ns_lshl_b32 s97, s97, 10\ns_and_b32 s98, {sIDX}, 15\ns_lshl_b32 s98, s98, 2\ns_add_u32 s97, s97, s98")
        A(f"s_lshl_b32 s98, {sK}, 7\ns_add_u32 s97, s97, s98\ns_add_u32 s97, s97, {TAB}")
        A(f"v_mov_b32 v{T}, s96\nv_mov_b32 v{T+1}, 0\ns_mov_b64 exec, 1")
        A(f"buffer_store_dword v{T}, v{T+1}, {WS}, s97 offen\nbuffer_store_dword v{T}, v{T+1}, {WS}, s97 offen offset:2048 sc1")
        A("s_mov_b64 exec, -1")

    def go_poll(first):
        out = lab("flagd")
        for i in range(2):
            A(f"s_load_dwordx4 s[44:47], s[24:25], {64*(first+i)}\ns_waitcnt lgkmcnt(0)")
            A(f"s_and_b64 s[44:45], s[44:45], s[46:47]\ns_and_b32 s44, s44, s45\ns_cmp_eq_u32 s44, 0x01010101\ns_cbranch_scc1 {out}")
            A(f"s_sleep {P['sleep_f']}")
        poll([f"buffer_load_ubyte v{T+10}, v3, {DBG}, 0 offen offset:{64*first} sc1"], lambda: A(f"v_cmp_eq_u32 vcc, 0, v{T+10}"), 1, P["sleep_f"])
        A.label(out)

    def set_loc(r):
        xcc("s96")
        A(f"v_cmp_ne_u32 vcc, s96, v{r}\ns_nop 1\ns_cmp_eq_u64 vcc, 0\ns_cselect_b32 {sLOC}, 1, 0")

    def tables():
        A(f"v_and_b32 v{T+8}, 1, v4\nv_lshlrev_b32 v{T+8}, 10, v{T+8}\nv_lshl_add_u32 v{T+8}, v3, 2, v{T+8}\ns_lshl_b32 s96, {sK}, 7\ns_add_u32 s96, s96, {TAB}\ns_add_u32 s97, s96, 2048")
        poll([f"buffer_load_dword v{T+9}, v{T+8}, {WS}, s96 offen sc1"], chk([T + 9]), 1, P["sleep_t"], alt=[("s96", "s97")])
        set_loc(T + 9)

    def when(cond, fn):
        l = lab("skip")
        A(f"{cond}\ns_cbranch_scc0 {l}")
        st = A.snap()
        fn()
        A.settle()
        A.label(l)
        A.restore(st)

    def zero(a, n):
        for r in range(a, a + n, 2):
            A(f"v_mov_b64 {r2(r)}, 0")

    def swap(a, b, n):
        for r in range(n):
            A(f"v_swap_b32 v{a+r}, v{b+r}")

    def copy(dst, src, n):
        for r in range(0, n, 2):
            A(f"v_mov_b64 {r2(dst+r)}, {r2(src+r)}")

    def next_layer(loop):
        A(f"s_add_u32 {sL}, {sL}, 1\ns_add_u32 {sLO}, {sLO}, {LST}")
        A.settle()
        A(f"s_branch {loop}")

    A("s_cmp_ge_u32 s2, 256\ns_cbranch_scc1 L_end")
    A("s_load_dwordx16 s[48:63], s[0:1], 0\ns_load_dwordx8 s[40:47], s[0:1], 64\ns_load_dwordx2 s[20:21], s[0:1], 96")
    stamp(12)
    A("v_lshrrev_b32 v2, 6, v0\nv_and_b32 v1, 63, v0")
    A(f"s_and_b32 {sK}, s2, 7\ns_lshr_b32 {sIDX}, s2, 3")
    A(f"v_readfirstlane_b32 {sW}, v2")
    A("v_and_b32 v3, 15, v1\nv_lshrrev_b32 v4, 4, v1")
    srd(WS, 268435456)
    srd(DBG, 256)
    A(f"s_mov_b32 s7, 0x20000\ns_mov_b32 s11, 0x20000\ns_mov_b32 {sSPIN}, {P['spin']}\ns_lshl_b32 {sLO}, {sK}, 16\ns_mov_b32 {sL}, 0\ns_mov_b32 {sLOC}, 0")
    A(f"s_cmp_lt_u32 {sIDX}, 16\ns_cbranch_scc1 L_w")

    sG, sB, sS, sGO, sLB, sF, sWQ, sQO = "s12", "s13", "s14", "s15", "s16", "s17", "s18", "s19"
    VA = 8
    ACT, SAV = 64, 128
    A("s_mov_b32 s6, 33554432\ns_mov_b32 s10, 33554432")
    A(f"s_bfe_u32 {sG}, {sIDX}, 0x10003\ns_bfe_u32 {sB}, {sIDX}, 0x10002\ns_and_b32 {sS}, {sIDX}, 3\ns_and_b32 {sWQ}, {sW}, 3")
    A(f"s_lshl_b32 s96, {sK}, 1\ns_add_u32 s96, s96, {sG}\ns_lshl_b32 s96, s96, 20\ns_lshl_b32 s97, {sB}, 24\ns_add_u32 s96, s96, s97")
    A(f"s_lshl_b32 s97, {sS}, 16\ns_add_u32 s96, s96, s97\ns_lshl_b32 s97, {sWQ}, 14\ns_add_u32 s96, s96, s97")
    A(f"s_add_u32 {sGO}, s96, {3072*256}\ns_lshl_b32 {sLB}, {sW}, 14")
    A(f"s_cmp_lt_u32 {sW}, 4\ns_cselect_b32 s96, 3, 2")
    A(f"v_and_b32 v5, s96, v4\nv_xor_b32 v5, v5, v3\nv_lshlrev_b32 v5, 4, v5\nv_lshl_add_u32 v{VA}, v4, 8, v5")
    for x in (1, 2, 3):
        A(f"v_xor_b32 v{VA+x}, {x<<6}, v{VA}")
    A("s_waitcnt lgkmcnt(0)")
    A(f"s_cselect_b64 {lo(SA)}, {pAk}, {pAv}\ns_cselect_b64 {lo(SB)}, {pBk}, {pBv}\ns_mov_b64 {lo(DBG)}, {pDbg}")
    A("s_cbranch_scc0 L_v")

    def kv_dma(buf, isv, i0, i1):
        for i in range(i0, i1):
            if i % 4 == 0 or i == i0:
                A(f"s_add_u32 m0, {sLB}, {(i>>2)*4096}\ns_add_u32 s96, {sGO}, {(i>>2)*4096}")
            x = ((i & 1) | ((i >> 3) << 1)) if isv else (i & 3)
            A(f"buffer_load_dwordx4 v{VA+x}, {buf}, s96 offen offset:{(i&3)*1024} {nt} lds")

    XI = 40
    srd(OUT, 2304)
    A(f"s_mov_b64 {lo(OUT)}, {pAx}\ns_mul_i32 s97, {sB}, 1152\nv_lshlrev_b32 v5, 4, v1\nv_lshlrev_b32 v6, 2, v1\nv_mov_b32 v{XI+4}, 0")
    A(f"buffer_load_dwordx4 {r4(XI)}, v5, {OUT}, s97 offen\ns_mov_b32 exec_hi, 0")
    A(f"buffer_load_dword v{XI+4}, v6, {OUT}, s97 offen offset:1024\ns_mov_b32 exec_hi, -1")
    kv_dma(SA, False, 0, 16)
    A("s_barrier")
    stamp(13)
    RA, aQ, aS, aP, aM, aML, IX = 12, 16, 17, 18, 19, 20, 21
    Q, Q1, ST, C = 24, 28, 22, 32
    A(f"v_xor_b32 v5, v4, v3\nv_lshlrev_b32 v5, 4, v5\nv_lshl_add_u32 v5, v3, 8, v5\nv_add_u32 v{RA}, {sLB}, v5")
    for x in (1, 2, 3):
        A(f"v_xor_b32 v{RA+x}, {x<<6}, v{RA}")
    A(f"s_lshl_b32 s96, {sG}, 11\ns_lshl_b32 s97, {sB}, 10\ns_add_u32 s96, s96, s97\nv_lshlrev_b32 v{aQ}, 4, v1\nv_add_u32 v{aQ}, s96, v{aQ}")
    A(f"s_mul_i32 s96, {sB}, {SMB}\ns_add_u32 s96, s96, {SM}\nv_lshlrev_b32 v{aS}, 3, v1\nv_add_u32 v{aS}, s96, v{aS}")
    A("v_and_b32 v5, 2, v4\nv_lshrrev_b32 v6, 3, v3\nv_add_u32 v5, v5, v6\nv_lshlrev_b32 v5, 8, v5")
    A("v_and_b32 v6, 1, v4\nv_lshl_add_u32 v5, v6, 5, v5\nv_and_b32 v7, 7, v3\nv_lshl_add_u32 v5, v7, 2, v5")
    A(f"s_lshl_b32 s96, {sW}, 6\ns_add_u32 s96, s96, {PB}\nv_add_u32 v{aP}, s96, v5")
    A(f"s_lshl_b32 s96, {sW}, 2\ns_add_u32 s96, s96, {MB}\nv_add_u32 v5, s96, v1\nv_lshlrev_b32 v7, 2, v1\nv_add_u32 v7, {MB+64}, v7")
    A(f"v_and_b32 v{aM}, 47, v1\nv_cmp_eq_u32 vcc, 0, v{aM}\nv_cndmask_b32 v{aM}, v7, v5, vcc")
    A(f"s_lshl_b32 s96, {sG}, 9\ns_lshl_b32 s97, {sB}, 7\ns_add_u32 s96, s96, s97\ns_lshl_b32 s97, {sS}, 5\ns_add_u32 s96, s96, s97")
    A(f"s_lshl_b32 s97, {sW}, 3\ns_add_u32 s96, s96, s97\ns_add_u32 s96, s96, {ML}\nv_lshlrev_b32 v{aML}, 8, v6\nv_add_u32 v{aML}, s96, v{aML}")
    A(f"v_and_b32 v5, 1, v1\nv_mul_u32_u24 v{IX}, 0xaaaa, v5\nv_add_u32 v{IX}, 0x4444, v{IX}")
    A(f"v_mov_b64 {r2(ST)}, 0\ns_waitcnt vmcnt(16)")
    for r in range(5):
        A(f"v_dot2c_f32_bf16 v{ST}, 0x3f803f80, v{XI+r}\nv_dot2c_f32_bf16 v{ST+1}, v{XI+r}, v{XI+r}")
    A.settle()
    A("s_branch L_k_f")

    def k_read(mid=None):
        A("s_waitcnt vmcnt(0)")
        if mid:
            mid()
        for Tt in range(4):
            for x in range(4):
                A(f"ds_read_b128 {r4(ACT+16*Tt+8*(x>>1)+4*(x&1))}, v{RA+x} offset:{Tt*4096}")
        A("s_waitcnt lgkmcnt(0)")
    ql = f"buffer_load_dwordx4 {r4(Q)}, v{aQ}, {WS}, {sQO} offen sc1"
    sl = f"s_mov_b32 exec_hi, 0xff\nbuffer_load_dwordx2 {r2(ST)}, v{aS}, {WS}, {sLO} offen sc1\ns_mov_b32 exec_hi, -1"
    A.label("L_k_l1")
    k_read()
    stamp(0)
    poll([sl, ql], chk([ST, ST + 1, Q + 3]), P["d1"], P["sl1"], P["sl1"])
    A("s_branch L_k_f")
    A.label("L_k_loop")
    A(f"s_mov_b32 {sQO}, {sLO}\ns_waitcnt vmcnt(0)\nv_mov_b32 v{Q+3}, -1")
    zero(C, 16)
    A(f"s_cmp_eq_u32 {sL}, 1\ns_cbranch_scc1 L_k_l1")
    stamp(0)
    poll([sl], chk([ST, ST + 1]), 1, P["sleep_s"])
    A.label("L_k_f")
    stamp(1)
    SX, SQ = T + 2, T + 3
    A(f"v_mov_b64 {r2(SX)}, {r2(ST)}")
    A(f"v_permlane32_swap_b32 v{SX}, v{SQ}")
    A(f"v_add_f32 v{T+4}, v{SX}, v{SQ}\nv_add_f32 v{SX}, v{SX}, v{SQ}")
    A(f"v_permlane16_swap_b32 v{SX}, v{T+4}")
    A(f"v_add_f32 v{SX}, v{SX}, v{T+4}")
    for d in ("quad_perm:[1,0,3,2]", "quad_perm:[2,3,0,1]", "row_ror:4", "row_ror:8"):
        A(f"v_add_f32_dpp v{SX}, v{SX}, v{SX} {d} {DPPALL}")
    A(f"v_mul_f32 v{SX}, {f2u(1/576.0):#x}, v{SX}")
    A(f"v_readlane_b32 s96, v{SX}, 32")
    A(f"v_fma_f32 v{SQ}, -v{SX}, v{SX}, s96\nv_max_f32 v{SQ}, 0, v{SQ}")
    A(f"v_add_f32 v{SQ}, {f2u(1e-5):#x}, v{SQ}\nv_rsq_f32 v{SQ}, v{SQ}")
    A(f"v_mul_f32 v{SQ}, {f2u(128**-0.5*math.log2(math.e)):#x}, v{SQ}")
    A(f"v_readfirstlane_b32 {sF}, v{SQ}")
    A(f"s_cmp_eq_u32 {sL}, 0\ns_cbranch_scc0 L_k_q")
    go_poll(2)
    stamp(15)
    A(f"v_mov_b64 {r2(ST)}, 0\nv_lshlrev_b32 v{T+8}, 2, v3")
    zero(C, 16)
    k_read(lambda: when(f"s_cmp_eq_u32 {sW}, 0", tab_store))
    A(f"s_lshl_b32 s97, {sK}, 7\ns_add_u32 s97, s97, {TAB}\ns_add_u32 s98, s97, 2048\ns_mov_b32 {sQO}, {sLO}\ns_lshl_b32 s96, {sK}, 12\ns_add_u32 s96, s96, {QM2}")
    stamp(14)
    stamp(0)
    poll([f"buffer_load_dword v{T+12}, v{T+8}, {WS}, s97 offen sc1", ql], chk([T + 12, Q + 3]), P["d0"], P["sl0"], P["sl0"], alt=[("s97", "s98"), (sQO, "s96")])
    set_loc(T + 12)
    A(f"v_mov_b32 v{T}, {LOCW}\nv_mov_b32 v{T+1}, {sLOC}\nds_write_b32 v{T}, v{T+1}")
    A("s_branch L_k_q")
    A.label("L_k_again")
    zero(C, 16)
    A(f"v_mov_b32 v{Q+3}, -1")
    A.label("L_k_q")
    poll([ql], chk([Q + 3]), 1, P["sleep_q"], pre=True)
    stamp(2)
    KB = lambda Tt, ks: r8(ACT + 16 * Tt + 8 * ks)
    Cc = lambda Tt: C + 4 * Tt
    U0, U1, X0, X1, M0_, M1, M2, XF0, XF1 = T, T + 1, T + 2, T + 3, T + 4, T + 5, T + 6, T + 7, T + 8

    def fold(Ta, X):
        A(f"v_add_f32 v{U0}, v{Cc(Ta)}, v{Cc(Ta)+1}\nv_add_f32 v{U1}, v{Cc(Ta)+2}, v{Cc(Ta)+3}")
        yield
        A(f"v_add_f32_dpp v{U0}, v{Cc(Ta+1)}, v{Cc(Ta+1)+1} quad_perm:[0,1,2,3] row_mask:0xc bank_mask:0xf")
        A(f"v_add_f32_dpp v{U1}, v{Cc(Ta+1)+2}, v{Cc(Ta+1)+3} quad_perm:[0,1,2,3] row_mask:0xc bank_mask:0xf")
        yield
        A(f"v_permlane16_swap_b32 v{U0}, v{U1}")
        A(f"v_add_f32 v{X}, v{U0}, v{U1}")
        yield
    A(f"{smf} {r4(Cc(0))}, {r4(Q)}, {KB(0,0)}, v{IX}")
    A(f"v_mov_b32_dpp v{Q1}, v{Q} row_ror:8 {DPPALL}\nv_mov_b32_dpp v{Q1+1}, v{Q+1} row_ror:8 {DPPALL}")
    A(f"{smf} {r4(Cc(1))}, {r4(Q)}, {KB(1,1)}, v{IX}")
    A(f"v_mov_b32_dpp v{Q1+2}, v{Q+2} row_ror:8 {DPPALL}\nv_mov_b32_dpp v{Q1+3}, v{Q+3} row_ror:8 {DPPALL}")
    A(f"{smf} {r4(Cc(2))}, {r4(Q)}, {KB(2,0)}, v{IX}")
    A(f"{smf} {r4(Cc(0))}, {r4(Q1)}, {KB(0,1)}, v{IX}")
    A(f"{smf} {r4(Cc(1))}, {r4(Q1)}, {KB(1,0)}, v{IX}")
    A(f"{smf} {r4(Cc(3))}, {r4(Q)}, {KB(3,1)}, v{IX}")
    A(f"{smf} {r4(Cc(2))}, {r4(Q1)}, {KB(2,1)}, v{IX}")
    A(f"{smf} {r4(Cc(3))}, {r4(Q1)}, {KB(3,0)}, v{IX}")
    A.mark_done(list(range(Cc(0), Cc(2))), 3)
    for _ in fold(0, X0):
        pass
    for _ in fold(2, X1):
        pass
    A(f"v_max_f32 v{M0_}, v{X0}, v{X1}")
    A(f"v_cmp_u_f32 vcc, v{X0}, v{X1}\nv_mul_f32 v{XF0}, {sF}, v{X0}")
    A(f"v_max_f32_dpp v{M0_}, v{M0_}, v{M0_} quad_perm:[1,0,3,2] {DPPALL}")
    A(f"v_mul_f32 v{XF1}, {sF}, v{X1}")
    retry("L_k_again")
    A(f"v_max_f32_dpp v{M0_}, v{M0_}, v{M0_} quad_perm:[2,3,0,1] {DPPALL}")
    A(f"v_max_f32_dpp v{M0_}, v{M0_}, v{M0_} row_ror:4 {DPPALL}")
    A(f"v_max_f32_dpp v{M1}, v{M0_}, v{M0_} row_ror:8 {DPPALL}\nv_max_f32_dpp v{M0_}, v{M0_}, v{M0_} row_ror:8 {DPPALL}")
    A(f"v_permlane32_swap_b32 v{M0_}, v{M1}")
    A(f"v_max_f32 v{M0_}, v{M0_}, v{M1}")
    A(f"v_fma_f32 v{X0}, -v{M0_}, {sF}, v{XF0}\nv_fma_f32 v{X1}, -v{M0_}, {sF}, v{XF1}")
    A(f"v_exp_f32 v{X0}, v{X0}\nv_exp_f32 v{X1}, v{X1}")
    MF, LSUM = T + 10, T + 11
    A(f"v_mul_f32 v{MF}, {sF}, v{M0_}")
    A(f"v_cvt_pk_bf16_f32 v{U0}, v{X0}, v{X1}")
    A(f"ds_write_b32 v{aP}, v{U0}\nds_write_b32 v{aM}, v{MF}")
    A(f"v_add_f32 v{LSUM}, v{X0}, v{X1}")
    if P["kb1"]:
        when(f"s_cmp_eq_u32 {sL}, 0", lambda: kv_dma(SB, False, 0, P["kb1"]))
    stamp(3)
    A("s_waitcnt lgkmcnt(0)\ns_barrier")
    for d in ("quad_perm:[1,0,3,2]", "quad_perm:[2,3,0,1]", "row_ror:4"):
        A(f"v_add_f32_dpp v{LSUM}, v{LSUM}, v{LSUM} {d} {DPPALL}")
    A(f"v_add_f32_dpp v{M1}, v{LSUM}, v{LSUM} row_ror:8 {DPPALL}\nv_add_f32_dpp v{LSUM}, v{LSUM}, v{LSUM} row_ror:8 {DPPALL}")
    A(f"v_min_u32 v{MF}, -2, v{MF}")
    loc_test()
    A(f"v_permlane32_swap_b32 v{LSUM}, v{M1}")
    A(f"v_add_f32 v{LSUM}, v{LSUM}, v{M1}\nv_min_u32 v{LSUM}, -2, v{LSUM}\ns_mov_b64 exec, 0x10001")
    store_mode(f"buffer_store_dwordx2 {r2(MF)}, v{aML}, {WS}, {sLO} offen")
    A("s_mov_b64 exec, -1")
    stamp(4)
    keep([0, 1, 2, 3, 4])
    A(f"s_cmp_eq_u32 {sL}, 3\ns_cbranch_scc1 L_k_end")
    A("s_barrier")
    A(f"s_cmp_eq_u32 {sL}, 0\ns_cbranch_scc0 L_k_swap")
    kv_dma(SB, False, P["kb1"], 16)
    copy(SAV, ACT, 64)
    A("s_branch L_k_next")
    A.label("L_k_swap")
    swap(SAV, ACT, 64)
    A.label("L_k_next")
    next_layer("L_k_loop")
    A.label("L_k_end")
    keep([12, 13, 14, 15], False)
    dump(0, [0, 1, 2, 3, 4], [12, 13, 14, 15])
    A("s_endpgm")

    A.label("L_v")
    A(f"v_mov_b32 v{T}, {VF}\nv_mov_b64 {r2(T+2)}, 0\nv_mov_b64 {r2(T+4)}, 0\nds_write_b128 v{T}, {r4(T+2)}")
    RV, aPr, aMo, aMa, aO, aVF = 12, 14, 15, 16, 17, 18
    PA, MA, MO, D = 24, 28, 22, 192
    A("v_bfe_u32 v5, v1, 2, 1\nv_bfe_u32 v6, v1, 3, 1\nv_and_b32 v7, 1, v4")
    A(f"v_lshlrev_b32 v{T}, 5, v5\nv_and_b32 v{T+1}, 2, v4\nv_lshl_add_u32 v{T}, v{T+1}, 2, v{T}\nv_lshl_add_u32 v{T}, v6, 2, v{T}\nv_lshl_add_u32 v{T}, v7, 1, v{T}")
    A(f"v_lshl_add_u32 v{T+1}, v6, 1, v7\nv_lshl_add_u32 v{T+1}, v5, 2, v{T+1}\ns_lshl_b32 s96, {sWQ}, 1\nv_xor_b32 v{T+1}, s96, v{T+1}")
    A(f"v_lshlrev_b32 v{T}, 8, v{T}\nv_lshl_add_u32 v{T}, v{T+1}, 5, v{T}\nv_and_b32 v{T+1}, 3, v1\nv_lshl_add_u32 v{T}, v{T+1}, 3, v{T}")
    A(f"v_add_u32 v{RV}, 0x10000, v{T}\nv_xor_b32 v{RV+1}, 32, v{RV}")
    A(f"v_lshlrev_b32 v{aPr}, 4, v1\nv_add_u32 v{aPr}, {PB}, v{aPr}\nv_lshlrev_b32 v{aMo}, 2, v4\nv_add_u32 v{aMo}, {MB}, v{aMo}\nv_mov_b32 v{aMa}, {MB}")
    A(f"s_lshl_b32 s96, {sG}, 12\ns_lshl_b32 s97, {sWQ}, 9\ns_add_u32 s96, s96, s97\ns_and_b32 s97, {sIDX}, 7\ns_lshl_b32 s97, s97, 4\ns_add_u32 s96, s96, s97\ns_add_u32 s96, s96, {OM}")
    A(f"v_lshlrev_b32 v{aO}, 11, v7\nv_lshrrev_b32 v{T}, 1, v4\nv_lshl_add_u32 v{aO}, v{T}, 8, v{aO}\nv_lshl_add_u32 v{aO}, v6, 7, v{aO}")
    A(f"v_and_b32 v{T}, 7, v1\nv_lshl_add_u32 v{aO}, v{T}, 1, v{aO}\nv_add_u32 v{aO}, s96, v{aO}")
    A(f"s_lshl_b32 s96, {sWQ}, 2\ns_add_u32 s96, s96, {VF}\nv_mov_b32 v{aVF}, s96\nv_mov_b32 v{aVF+1}, {VF}")
    A(f"v_and_b32 v5, 1, v1\nv_mul_u32_u24 v{IX}, 0xaaaa, v5\nv_add_u32 v{IX}, 0x4444, v{IX}")
    A("s_waitcnt lgkmcnt(0)\ns_barrier")
    kv_dma(SA, True, 0, 16)
    A.settle()
    A.label("L_v_loop")

    def v_read():
        top, out = lab("vf"), lab("vfd")
        A(f"s_add_u32 s96, {sL}, 1\nv_mov_b32 v{T}, s96\ns_waitcnt vmcnt(0)\nds_write_b32 v{aVF}, v{T}")
        stamp(8)
        A.label(top)
        A(f"ds_read_b128 {r4(T+4)}, v{aVF+1}")
        A(f"s_sub_u32 {sSPIN}, {sSPIN}, 1\ns_cmp_lt_i32 {sSPIN}, 0\ns_waitcnt lgkmcnt(0)\ns_cbranch_scc1 {out}")
        A(f"v_min3_u32 v{T+1}, v{T+4}, v{T+5}, v{T+6}\nv_min_u32 v{T+1}, v{T+1}, v{T+7}\nv_cmp_gt_u32 vcc, s96, v{T+1}\ns_cbranch_vccnz {top}")
        A.label(out)
        for j in range(4):
            for u in range(2):
                for hi in range(2):
                    for pp in range(2):
                        A(f"ds_read_b64_tr_b16 {r2(ACT+16*j+8*u+4*hi+2*pp)}, v{RV+u} offset:{(64*j+16*hi+pp)*256}")
        A("s_waitcnt lgkmcnt(0)")
    when(f"s_cmp_lt_u32 {sL}, 2", v_read)
    zero(D, 32)
    if P["prio_v"]:
        A(f"s_setprio {P['prio_v']}")
    stamp(5)
    if P["stamps"]:
        A("s_waitcnt lgkmcnt(0)")
    A("s_barrier")
    A(f"ds_read_b128 {r4(PA)}, v{aPr}\nds_read_b128 {r4(MA)}, v{aMa}\nds_read_b128 {r4(MA+4)}, v{aMa} offset:16")
    A(f"ds_read2_b32 {r2(MO)}, v{aMo} offset0:0 offset1:4")
    A("s_waitcnt lgkmcnt(3)")
    Dd = lambda j, u: D + 8 * j + 4 * u
    Y = T
    AL = T + 4

    def pv(j, u):
        A(f"{smf} {r4(Dd(j,u))}, {r4(PA)}, {r8(ACT+16*j+8*u)}, v{IX}")

    def pick(j, u):
        for h in range(2):
            if j == 0:
                A(f"v_add_f32 v{Y+2*u+h}, v{Dd(j,u)+2*h}, v{Dd(j,u)+2*h+1}")
            else:
                A(f"v_add_f32_dpp v{Y+2*u+h}, v{Dd(j,u)+2*h}, v{Dd(j,u)+2*h+1} quad_perm:[0,1,2,3] row_mask:{1<<j:#x} bank_mask:0xf")
    pv(0, 0)
    A("s_waitcnt lgkmcnt(0)")
    stamp(6)
    pv(0, 1)
    A(f"v_max3_f32 v{AL}, v{MA}, v{MA+1}, v{MA+2}\nv_max3_f32 v{AL+1}, v{MA+4}, v{MA+5}, v{MA+6}\nv_max_f32 v{AL}, v{AL}, v{MA+3}")
    pv(1, 0)
    A(f"v_max_f32 v{AL+1}, v{AL+1}, v{MA+7}\nv_sub_f32 v{AL}, v{MO}, v{AL}\nv_sub_f32 v{AL+1}, v{MO+1}, v{AL+1}")
    pv(1, 1)
    A(f"v_exp_f32 v{AL}, v{AL}\nv_exp_f32 v{AL+1}, v{AL+1}")
    pv(2, 0)
    pick(0, 0)
    pv(2, 1)
    pick(0, 1)
    pv(3, 0)
    pick(1, 0)
    pv(3, 1)
    pick(1, 1)
    when(f"s_cmp_eq_u32 {sL}, 0", read_loc0 := (lambda: A(f"v_mov_b32 v{T+8}, {LOCW}\nds_read_b32 v{T+9}, v{T+8}\ns_waitcnt lgkmcnt(0)\nv_readfirstlane_b32 {sLOC}, v{T+9}")))
    pick(2, 0)
    pick(2, 1)
    loc_test()
    pick(3, 0)
    A(f"v_mul_f32 v{Y}, v{Y}, v{AL}\nv_mul_f32 v{Y+1}, v{Y+1}, v{AL+1}")
    pick(3, 1)
    A(f"v_mul_f32 v{Y+2}, v{Y+2}, v{AL}\nv_mul_f32 v{Y+3}, v{Y+3}, v{AL+1}")
    A(f"v_permlane32_swap_b32 v{Y}, v{Y+2}\nv_permlane32_swap_b32 v{Y+1}, v{Y+3}")
    A(f"v_add_f32 v{Y}, v{Y}, v{Y+2}\nv_add_f32 v{Y+1}, v{Y+1}, v{Y+3}")
    A(f"v_permlane16_swap_b32 v{Y}, v{Y+1}")
    A(f"v_add_f32 v{Y}, v{Y}, v{Y+1}")
    A(f"v_cvt_pk_bf16_f32 v{Y}, v{Y}, v{Y}\nv_min_u32 v{Y}, 0xfffefffe, v{Y}")
    store_mode(f"buffer_store_short v{Y}, v{aO}, {WS}, {sLO} offen")
    stamp(7)
    if P["prio_v"]:
        A("s_setprio 0")
    keep([5, 6, 7, 8])
    A(f"s_cmp_eq_u32 {sL}, 3\ns_cbranch_scc1 L_v_end")
    A("s_barrier")
    A(f"s_cmp_eq_u32 {sL}, 0\ns_cbranch_scc0 L_v_swap")
    kv_dma(SB, True, 0, 16)
    copy(SAV, ACT, 64)
    A("s_branch L_v_next")
    A.label("L_v_swap")
    swap(SAV, ACT, 64)
    A.label("L_v_next")
    next_layer("L_v_loop")
    A.label("L_v_end")
    dump(4, [5, 6, 7, 8], [])
    A("s_endpgm")

    A.label("L_w")
    sC, sTY, sKH, sCG, sMODE, sG0, sHALF, sPO = "s100", "s101", "s58", "s59", "s60", "s61", "s62", "s63"
    A("s_mov_b32 s6, 4718592\ns_mov_b32 s10, 4718592")
    srd(XS, 2304)
    srd(OUT, 2304)
    srd(PUB, 268435456)
    A(f"s_and_b32 {sC}, {sIDX}, 7\ns_lshr_b32 {sTY}, {sIDX}, 3")
    A("v_lshrrev_b32 v5, 3, v1\nv_and_b32 v6, 7, v1\nv_lshrrev_b32 v7, 5, v1\nv_lshlrev_b32 v7, 1, v7\nv_xor_b32 v7, v7, v6")
    A(f"s_cmp_lt_u32 {sW}, 4\ns_cbranch_scc0 L_o")

    aRD, aXS, aXG, aXR, aPB, aSM, aIO, XV = 8, 9, 10, 11, 12, 13, 14, 15
    G = 16

    def rg_setup(t_scalar):
        A(t_scalar)
        A(f"s_mul_i32 s96, {sC}, 5\ns_add_u32 s96, s96, s97")
        A(f"v_lshl_add_u32 v{T}, v6, 2, v4\nv_lshlrev_b32 v{T+1}, 2, v{T}")
        A(f"s_lshl_b32 s98, s97, 10\ns_add_u32 s98, s98, {RED}\nv_lshlrev_b32 v{aXG}, 4, v1\nv_add_u32 v{aRD}, s98, v{aXG}")
        A(f"s_lshl_b32 s98, s96, 10\nv_add_u32 v{aXG}, s98, v{aXG}\ns_lshl_b32 s99, {sK}, 7\ns_add_u32 s98, s98, s99\nv_add_u32 v{aXS}, s98, v{T+1}")
        A(f"s_lshl_b32 s98, s96, 7\nv_add_u32 v{aXR}, s98, v{T+1}")
        A(f"v_lshrrev_b32 v{T+2}, 2, v6\ns_lshl_b32 s98, s96, 3\ns_add_u32 s98, s98, {SM}")
        A(f"v_mul_u32_u24 v{aSM}, {SMB}, v{T+2}\nv_lshrrev_b32 v{T+3}, 5, v1\nv_lshl_add_u32 v{aSM}, v{T+3}, 2, v{aSM}\nv_add_u32 v{aSM}, s98, v{aSM}")
        A(f"s_lshl_b32 s98, {sC}, 2\ns_add_u32 s98, s98, s97\ns_lshr_b32 s99, {sC}, 1\ns_add_u32 s99, s99, 32")
        A(f"s_cmp_eq_u32 s97, 4\ns_cselect_b32 s98, s99, s98\ns_cselect_b32 {sHALF}, 0.5, 1.0\ns_cselect_b64 vcc, -1, 0\ns_and_b32 s99, {sC}, 1")
        A(f"v_bfe_u32 v{T+3}, v{T}, 3, 1\nv_mov_b32 v{T+4}, s99\nv_cndmask_b32 v{T+3}, v{T+3}, v{T+4}, vcc")
        A(f"v_and_b32 v{T+4}, 7, v{T}\nv_lshl_add_u32 v{T+4}, v{T+3}, 3, v{T+4}\nv_lshlrev_b32 v{T+4}, 1, v{T+4}")
        A(f"s_lshl_b32 s99, s98, 5\nv_mul_u32_u24 v{aIO}, 1152, v{T+2}\nv_add3_u32 v{aIO}, v{aIO}, v{T+4}, s99")
        A("s_cmp_ge_u32 s98, 18\ns_cselect_b32 s99, 1, 0\ns_cselect_b32 s96, 18, 0\ns_sub_u32 s98, s98, s96")
        A(f"s_and_b32 s96, s98, 3\ns_lshl_b32 s96, s96, 8\ns_lshr_b32 s97, s98, 2\ns_lshl_b32 s97, s97, 6\ns_add_u32 s96, s96, s97\ns_lshl_b32 s97, s99, 10\ns_add_u32 s96, s96, s97\ns_add_u32 s96, s96, {XM}")
        A(f"s_and_b32 s97, s98, 1\ns_lshl_b32 s97, s97, 6\ns_lshl_b32 s99, s99, 7\ns_add_u32 s97, s97, s99\ns_add_u32 s97, s97, {XE}")
        A(f"s_cmp_lt_u32 s98, 16\ns_cselect_b32 s96, s96, s97\nv_lshl_add_u32 v{aPB}, v{T+2}, 5, v{T+4}\nv_add_u32 v{aPB}, s96, v{aPB}")
        A(f"s_mov_b32 {sXPO}, {XP}\ns_lshl_b32 {sXRO}, {sK}, 15\ns_add_u32 {sXRO}, {sXRO}, {XR}")

    def tr_base(dst):
        A(f"v_bfe_u32 v{T}, v1, 2, 1\nv_bfe_u32 v{T+1}, v1, 3, 1\nv_and_b32 v{T+2}, 1, v4\nv_lshrrev_b32 v{T+3}, 1, v4")
        A(f"v_lshl_add_u32 v{dst}, v{T+3}, 4, v{T}\nv_lshl_add_u32 v{dst}, v{T+2}, 2, v{dst}\nv_lshl_add_u32 v{dst}, v{T+1}, 3, v{dst}")
        A(f"v_lshl_add_u32 v{dst+1}, v{T+1}, 1, v{T+2}")

    def w_srds():
        A(f"s_mov_b64 {lo(DBG)}, {pDbg}\ns_mov_b64 {lo(XS)}, {pAx}\ns_mov_b64 {lo(OUT)}, {pOut}\ns_mov_b64 {lo(PUB)}, {lo(WS)}")

    aW, aTR, aXO, aXT, aXE, aQS, QI = 24, 25, 26, 27, 28, 29, 30
    XO, XT, XX, X0R = 32, 36, 40, 224
    DQ, EQ = 160, 176
    WQ, WSV = 64, 112
    sE = "s[56:57]"
    A(f"s_and_b32 s96, {sW}, 1\ns_lshl_b32 s96, s96, 2\nv_xor_b32 v{aW}, s96, v7\nv_lshlrev_b32 v{aW}, 4, v{aW}\nv_lshl_add_u32 v{aW}, v5, 13, v{aW}")
    A(f"s_and_b32 s98, {sIDX}, 1\ns_mul_i32 s96, s98, {288*8192}\ns_lshl_b32 s97, {sW}, 16\ns_add_u32 s96, s96, s97\ns_lshl_b32 s97, {sK}, 10\ns_add_u32 s96, s96, s97")
    A(f"s_lshr_b32 s97, {sIDX}, 1\ns_xor_b32 s97, s97, {P['cgx']}\ns_lshl_b32 s97, s97, 7\ns_add_u32 s99, s96, s97")
    A(f"v_bfe_u32 v{T}, v1, 1, 1\nv_mul_u32_u24 v{T}, 1152, v{T}\nv_and_b32 v{T+1}, 1, v1\nv_lshl_add_u32 v{T}, v{T+1}, 4, v{T}")
    A(f"v_bfe_u32 v{T+1}, v1, 2, 2\nv_lshl_add_u32 v{T+2}, v4, 5, v{T}\nv_lshl_add_u32 v{T+2}, v{T+1}, 7, v{T+2}")
    A(f"v_and_b32 v{T+3}, 1, v4\nv_lshl_add_u32 v{T+3}, v{T+3}, 5, v{T}\nv_xor_b32 v{T+1}, s98, v{T+1}\nv_and_b32 v{T+1}, 1, v{T+1}\nv_mul_u32_u24 v{T+4}, 576, v{T+1}\nv_add_u32 v{T+3}, v{T+3}, v{T+4}")
    A(f"s_mul_i32 s96, s98, 576\ns_sub_u32 s97, 576, s96")
    zero(X0R + 8, 4)
    A("s_waitcnt lgkmcnt(0)")
    A(f"s_mov_b64 {lo(SA)}, {pAq}\ns_mov_b64 {lo(SB)}, {pBq}")
    w_srds()
    A(f"s_mov_b32 {sKH}, s98\ns_lshr_b32 {sCG}, {sIDX}, 1\ns_xor_b32 {sCG}, {sCG}, {P['cgx']}\ns_mov_b32 {sG0}, s99\ns_mov_b32 s56, 0x000f000f\ns_mov_b32 s57, 0x00ff00ff")

    def wq_dma(buf):
        A(f"s_lshl_b32 s98, {sW}, 10")
        for t in range(9):
            A(f"s_add_u32 m0, s98, {t*4096}\ns_add_u32 s99, {sG0}, {t*32*8192}")
            A(f"buffer_load_dwordx4 v{aW}, {buf}, s99 offen {nt} lds")
    isclr = "s_and_b32 s99, s2, 0xc6\ns_cmp_eq_u32 s99, 0x40"
    when(isclr, lambda: A("s_barrier"))
    wq_dma(SA)
    A(f"buffer_load_dwordx4 {r4(X0R)}, v{T+2}, {XS}, s96 offen\nbuffer_load_dwordx4 {r4(X0R+4)}, v{T+2}, {XS}, s97 offen")
    A(f"s_mov_b64 exec, {sE}\nbuffer_load_dwordx4 {r4(X0R+8)}, v{T+3}, {XS}, 0 offen offset:512\ns_mov_b64 exec, -1")
    A("s_barrier")
    stamp(13)
    A(f"v_and_b32 v{aXE}, 3, v1\nv_lshlrev_b32 v{aXE}, 4, v{aXE}\nv_lshl_add_u32 v{aXE}, v{T+1}, 7, v{aXE}\nv_and_b32 v{T+5}, 1, v4\nv_lshl_add_u32 v{aXE}, v{T+5}, 6, v{aXE}\nv_add_u32 v{aXE}, {XE}, v{aXE}")
    A(f"s_lshl_b32 s96, {sKH}, 10\ns_add_u32 s96, s96, {XM}\nv_lshlrev_b32 v{aXO}, 4, v1\nv_add_u32 v{aXO}, s96, v{aXO}\nv_xor_b32 v{aXT}, 0x400, v{aXO}")
    A(f"s_lshr_b32 s96, {sCG}, 2\ns_lshl_b32 s96, s96, 11\ns_lshl_b32 s97, {sW}, 8\ns_add_u32 s96, s96, s97\ns_and_b32 s97, {sCG}, 1\ns_lshl_b32 s97, s97, 7\ns_add_u32 s96, s96, s97")
    A(f"s_lshl_b32 s97, {sKH}, 6\ns_add_u32 s96, s96, s97\ns_and_b32 s97, {sCG}, 2\ns_lshl_b32 s97, s97, 4\ns_add_u32 s96, s96, s97")
    A(f"v_and_b32 v{QI}, 1, v1\nv_lshlrev_b32 v{aQS}, 1, v{QI}\nv_and_b32 v{T+5}, 12, v1\nv_add_u32 v{aQS}, v{aQS}, v{T+5}\nv_bfe_u32 v{T+5}, v1, 1, 1\nv_lshl_add_u32 v{aQS}, v{T+5}, 4, v{aQS}")
    A(f"v_lshrrev_b32 v{T+5}, 5, v1\nv_lshl_add_u32 v{aQS}, v{T+5}, 10, v{aQS}\nv_add_u32 v{aQS}, s96, v{aQS}")
    A(f"v_mul_u32_u24 v{QI}, 0xaaaa, v{QI}\nv_add_u32 v{QI}, 0x4444, v{QI}")
    tr_base(T + 8)
    A(f"v_xor_b32 v{T+9}, {sW}, v{T+9}\nv_lshlrev_b32 v{aTR}, 7, v{T+8}\nv_lshl_add_u32 v{aTR}, v{T+9}, 5, v{aTR}\nv_and_b32 v{T}, 3, v1\nv_lshl_add_u32 v{aTR}, v{T}, 3, v{aTR}")
    rg_setup("s_mov_b32 s97, 4")
    A(f"buffer_load_ushort v{XV}, v{aIO}, {XS}, 0 offen")

    def q_flags():
        A("s_waitcnt vmcnt(12)")
        go_poll(0)
        stamp(15)
    when(f"s_cmp_eq_u32 {sW}, 1", q_flags)
    A("s_waitcnt vmcnt(0) lgkmcnt(0)")
    stamp(14)
    A(f"v_lshlrev_b32 v{XV}, 16, v{XV}\ns_mov_b32 {sLOC}, 1")
    A("s_barrier")

    def colsum(mode):
        for st in range(5):
            for hi in range(2 if st < 4 else 1):
                for pp in range(2):
                    A(f"ds_read_b64_tr_b16 {r2(WQ+8*st+4*hi+2*pp)}, v{aTR} offset:{(64*st+32*hi+2*pp)*128}")
        zero(WQ + 36, 8)
        zero(DQ, 20)
        zero(XT, 8)
        A(f"v_mov_b32 v{T}, 0x3f803f80")
        for r in range(4):
            A(f"v_mov_b32 v{XO+r}, v{T}")
        A("s_mov_b64 exec, 0x000f000f")
        for r in range(4):
            A(f"v_mov_b32 v{XX+r}, v{T}")
        A(f"s_mov_b64 exec, -1\ns_mov_b32 {sMODE}, {mode}\ns_waitcnt lgkmcnt(0)")
        A.settle()
        A("s_branch L_q_go")
        A.label(f"L_q_cs{mode}")
        A(f"s_mov_b32 {sMODE}, 0")
    colsum(1)
    copy(XO, X0R, 12)
    zero(DQ, 20)
    A.settle()
    A("s_branch L_q_go")
    A.label("L_q_loop")
    zero(DQ, 20)
    stamp(0)
    poll([f"buffer_load_dwordx4 {r4(XO)}, v{aXO}, {WS}, {sLO} offen sc1", f"buffer_load_dwordx4 {r4(XT)}, v{aXT}, {WS}, {sLO} offen sc1",
          f"s_mov_b64 exec, {sE}\nbuffer_load_dwordx4 {r4(XX)}, v{aXE}, {WS}, {sLO} offen sc1\ns_mov_b64 exec, -1"],
         chk([XO + 3, XT + 3, XX + 3]), 1, P["sleep_x"])
    A.label("L_q_go")
    stamp(1)
    E0, E1, Y0, Y1, Y2 = T, T + 1, T + 2, T + 3, T + 4
    A(f"{smf} {r4(EQ)}, {r4(XX)}, {r8(WQ+32)}, v{QI}")
    A(f"{smf} {r4(DQ)}, {r4(XO)}, {r8(WQ)}, v{QI}")
    A(f"{smf} {r4(EQ)}, {r4(XO)}, {r8(WQ+36)}, v{QI}")
    A(f"{smf} {r4(DQ+4)}, {r4(XO)}, {r8(WQ+8)}, v{QI}")
    A(f"{smf} {r4(EQ)}, {r4(XT)}, {r8(WQ+36)}, v{QI}")
    A(f"{smf} {r4(DQ+8)}, {r4(XO)}, {r8(WQ+16)}, v{QI}")
    A(f"{smf} {r4(DQ+12)}, {r4(XO)}, {r8(WQ+24)}, v{QI}")
    A.mark_done(list(range(DQ, DQ + 8)), 3)

    def qpick(j):
        for b_ in range(2):
            if j == 0:
                A(f"v_add_f32 v{Y0+b_}, v{DQ+2*b_}, v{DQ+2*b_+1}")
            else:
                A(f"v_add_f32_dpp v{Y0+b_}, v{DQ+4*j+2*b_}, v{DQ+4*j+2*b_+1} quad_perm:[0,1,2,3] row_mask:{1<<j:#x} bank_mask:0xf")
    qpick(0)
    qpick(1)
    A.mark_done(list(range(EQ, EQ + 4)), 2, 4)
    A(f"v_add_f32 v{E0}, v{EQ}, v{EQ+1}\nv_add_f32 v{E1}, v{EQ+2}, v{EQ+3}")
    qpick(2)
    qpick(3)
    A(f"v_add_f32 v{Y0}, v{Y0}, v{E0}\nv_add_f32 v{Y1}, v{Y1}, v{E1}")
    A(f"v_cmp_u_f32 vcc, v{E0}, v{E1}\ns_cmp_eq_u32 {sMODE}, 0")
    A(f"v_permlane32_swap_b32 v{Y0}, v{Y1}")
    A(f"v_add_f32 v{Y2}, v{Y0}, v{Y1}\nv_add_f32 v{Y0}, v{Y0}, v{Y1}")
    A("s_cbranch_scc0 L_q_cs")
    retry("L_q_again")
    A(f"v_permlane16_swap_b32 v{Y0}, v{Y2}")
    loc_test()
    A(f"v_add_f32 v{Y0}, v{Y0}, v{Y2}")
    A(f"v_cvt_pk_bf16_f32 v{Y0}, v{Y0}, v{Y0}\nv_min_u32 v{Y0}, 0xfffefffe, v{Y0}")
    store_mode(f"buffer_store_short v{Y0}, v{aQS}, {WS}, {sLO} offen")
    stamp(2)
    A("s_barrier")
    keep([0, 1, 2])
    A(f"s_cmp_eq_u32 {sL}, 0\ns_cbranch_scc0 L_q_swap")
    A(f"s_lshl_b32 s96, {sK}, 12\ns_add_u32 s96, s96, {QM2}\ns_mov_b32 exec_lo, 0xffff\ns_mov_b32 exec_hi, 0xffff")
    A(f"buffer_store_short v{Y0}, v{aQS}, {WS}, s96 offen sc1\ns_mov_b64 exec, -1")
    if P["hold"]:
        when(f"s_cmp_eq_u32 {sTY}, 1", lambda: A("s_barrier"))
    wq_dma(SB)
    copy(WSV, WQ, 44)
    tables()
    A(f"s_or_b32 s96, {sW}, {sTY}\ns_cbranch_scc0 L_rg")
    A("s_barrier")
    A.label("L_cs2")
    colsum(2)
    zero(XX, 4)
    A(f"s_or_b32 s96, {sW}, {sTY}\ns_cbranch_scc0 L_rg2\ns_branch L_w_next")
    A.label("L_q_swap")
    swap(WQ, WSV, 44)
    A(f"s_and_b32 s96, {sL}, 1\ns_cmp_eq_u32 s96, {sTY}\ns_cbranch_scc0 L_w_next")
    A(f"s_cmp_eq_u32 {sW}, 0\ns_cbranch_scc1 L_rg")
    A("s_barrier")
    A("s_branch L_w_next")
    A.label("L_q_again")
    A(f"s_cmp_eq_u32 {sL}, 0\ns_cbranch_scc0 L_q_loop")
    A(f"s_mov_b32 {sSPIN}, -1")
    zero(DQ, 20)
    A.settle()
    A("s_branch L_q_go")
    A.label("L_q_cs")
    A("s_nop 1")
    A(f"v_permlane16_swap_b32 v{Y0}, v{Y2}")
    A(f"v_add_f32 v{Y0}, v{Y0}, v{Y2}\nv_mul_f32 v{Y0}, {f2u(-1/576.0):#x}, v{Y0}\nv_cvt_pk_bf16_f32 v{Y0}, v{Y0}, v{Y0}")
    A.settle()
    for r in range(8):
        A(f"v_mov_b32 v{WQ+36+r}, v{Y0}")
    A(f"s_cmp_eq_u32 {sMODE}, 1\ns_cbranch_scc1 L_q_cs1\ns_branch L_q_cs2")

    A.label("L_o")
    aO0, aOX, aT0, aTX, aOM, aMLr, aRW, OI = 24, 26, 28, 27, 32, 33, 34, 35
    OA, MLr, FQ, DO, OB = 36, 44, 46, 160, 64
    sH = "s58"
    A(f"v_lshlrev_b32 v{aO0}, 4, v7\nv_mul_u32_u24 v{T}, 1152, v5\nv_xor_b32 v{aO0+1}, 64, v{aO0}\nv_add_u32 v{aO0}, v{aO0}, v{T}\nv_add_u32 v{aO0+1}, v{aO0+1}, v{T}")
    A(f"v_mul_u32_u24 v{aOX}, 1152, v1")
    A("s_waitcnt lgkmcnt(0)")
    A(f"s_cmp_eq_u32 {sTY}, 0\ns_cselect_b64 {lo(SA)}, {pAo}, {pBo}")
    w_srds()

    MK = 36

    for r in range(4):
        A(f"v_mov_b32 v{MK+r}, -1")
    A(f"v_lshlrev_b32 v{MK+4}, 4, v1\nv_lshlrev_b32 v{MK+5}, 4, v6\nv_lshl_add_u32 v{MK+5}, v5, 10, v{MK+5}")

    def marks():
        def first():
            la, lb = lab("fa"), lab("fb")
            A(f"s_cmp_eq_u32 {sK}, 0\ns_cbranch_scc0 {la}")
            A(f"s_lshl_b32 s96, {sC}, 16\ns_lshl_b32 s97, {sC}, 12\ns_add_u32 s97, s97, {QM2}")
            for so in ("s96", "s97"):
                for i in range(4):
                    A(f"buffer_store_dwordx4 {r4(MK)}, v{MK+4}, {WS}, {so} offen offset:{i*1024} sc1")
            A(f"s_branch {lb}")
            A.label(la)
            A(f"s_lshl_b32 s97, {sC}, 7\ns_add_u32 s97, s97, {XP}")
            for i in range(6):
                A(f"buffer_store_dwordx4 {r4(MK)}, v{MK+5}, {WS}, s97 offen sc1")
                if i < 5:
                    A("s_add_u32 s97, s97, 8192")
            A.label(lb)
        when(isclr, first)

    def clears():
        def own():
            A(f"s_lshl_b32 s96, {sIDX}, 12\ns_add_u32 s96, s96, {sLO}")
            for i in range(4):
                A(f"buffer_store_dwordx4 {r4(MK)}, v{MK+4}, {WS}, s96 offen offset:{i*1024} sc1")
        when(f"s_cmp_lg_u32 {sIDX}, 0", own)
        A(f"s_mul_i32 s96, {sC}, 5120\ns_mul_i32 s97, {sTY}, {XPL}\ns_add_u32 s96, s96, s97\ns_lshl_b32 s97, {sK}, 7\ns_add_u32 s96, s96, s97\ns_add_u32 s96, s96, {XP}\ns_add_u32 s97, s96, {2*XPL}")
        A("s_mov_b32 exec_hi, 0xff")
        A(f"buffer_store_dwordx4 {r4(MK)}, v{MK+5}, {WS}, s96 offen sc1\nbuffer_store_dwordx4 {r4(MK)}, v{MK+5}, {WS}, s97 offen sc1")
        A("s_mov_b32 exec_hi, -1")
    when(f"s_cmp_eq_u32 {sW}, 4", marks)
    A(f"s_sub_u32 {sH}, {sW}, 4\ns_lshl_b32 s96, {sK}, 2\ns_add_u32 s96, s96, {sH}\ns_mul_i32 {sG0}, s96, {128*1152}")
    rg_setup(f"s_mov_b32 s97, {sH}")
    tr_base(T + 8)
    A(f"s_lshl_b32 s96, {sH}, 14\ns_add_u32 s96, s96, {WO}\nv_lshlrev_b32 v{aT0}, 7, v{T+8}\nv_lshl_add_u32 v{aT0}, v{T+9}, 5, v{aT0}\nv_and_b32 v{T}, 3, v1")
    A(f"v_lshl_add_u32 v{aT0}, v{T}, 3, v{aT0}\nv_add_u32 v{aT0}, s96, v{aT0}")
    for t in (1, 2, 3):
        A(f"v_xor_b32 v{aT0+t}, {t<<5}, v{aT0}")
    A(f"s_lshl_b32 s96, {sH}, 11\ns_add_u32 s97, s96, {WOX}\nv_and_b32 v{T}, 1, v1\nv_lshlrev_b32 v{aTX}, 3, v{T}\nv_lshl_add_u32 v{aTX}, v{T+8}, 4, v{aTX}\nv_add_u32 v{aTX}, s97, v{aTX}")
    A(f"s_add_u32 s96, s96, {OM}\nv_lshlrev_b32 v{aOM}, 4, v1\nv_add_u32 v{aOM}, s96, v{aOM}")
    A(f"s_lshl_b32 s96, {sH}, 8\ns_add_u32 s97, s96, {ML}\nv_and_b32 v{T}, 31, v1\nv_lshlrev_b32 v{aMLr}, 3, v{T}\nv_add_u32 v{aMLr}, s97, v{aMLr}")
    A(f"s_add_u32 s96, s96, {RED}\nv_lshlrev_b32 v{aRW}, 2, v1\nv_add_u32 v{aRW}, s96, v{aRW}")
    A(f"v_bfe_u32 v{OI}, v1, 3, 1\nv_mul_u32_u24 v{OI}, 0xaaaa, v{OI}\nv_add_u32 v{OI}, 0x4444, v{OI}")

    sWI, sWM, sWS = "s59", "s56", "s57"

    def post():
        A(f"v_mov_b32 v{T}, 1\nv_lshlrev_b32 v{T+1}, 6, v1\ns_mov_b64 exec, 15\ns_lshl_b32 s96, {sC}, 1\ns_add_u32 s96, s96, {sK}\ns_waitcnt vmcnt(0)")
        A(f"buffer_store_byte v{T}, v{T+1}, {DBG}, s96 offen sc1")
        A("s_mov_b64 exec, -1")

    def first_a():
        when(f"s_cmp_eq_u32 {sW}, 4", post)
        A("s_barrier")
    when(isclr, first_a)
    A("s_barrier")
    when(f"s_cmp_eq_u32 {sW}, 4", clears)
    A(f"buffer_load_ushort v{XV}, v{aIO}, {XS}, 0 offen")
    A(f"s_mov_b32 {sWI}, 0\ns_lshl_b32 {sWM}, {sH}, 14\ns_add_u32 {sWM}, {sWM}, {WO}\ns_lshl_b32 {sWS}, {sC}, 7\ns_add_u32 {sWS}, {sWS}, {sG0}")

    def wo_run(lim):
        top, out = lab("wo"), lab("wod")
        A.label(top)
        A(f"s_cmp_ge_u32 {sWI}, {lim}\ns_cbranch_scc1 {out}")
        for e in range(2):
            A(f"s_mov_b32 m0, {sWM}\ns_add_u32 {sWM}, {sWM}, 1024")
            A(f"buffer_load_dwordx4 v{aO0+e}, {SA}, {sWS} offen {nt} lds")
            A(f"s_add_u32 {sWS}, {sWS}, {8*1152}")
        A(f"s_add_u32 {sWI}, {sWI}, 2\ns_branch {top}")
        A.label(out)

    def wo_extra():
        A(f"s_lshl_b32 s98, {sH}, 11\ns_lshl_b32 s97, {sC}, 4\ns_add_u32 s97, s97, {sG0}")
        for e in range(2):
            A(f"s_add_u32 m0, s98, {WOX+e*1024}\ns_add_u32 s99, s97, {e*64*1152+1024}")
            A(f"buffer_load_dwordx4 v{aOX}, {SA}, s99 offen lds")
    npf = 2 if P["pf"] else 0
    A(f"s_lshl_b32 s96, {sK}, 5\ns_lshl_b32 s97, {sC}, 2\ns_add_u32 s96, s96, s97\ns_add_u32 s96, s96, {sH}\ns_mul_i32 s96, s96, {16*1152}\ns_lshl_b32 s98, {sH}, 11")
    for e in range(npf):
        A(f"s_add_u32 m0, s98, {WOX+e*1024}\ns_add_u32 s99, s96, {e*8*1152+1024}")
        A(f"buffer_load_dwordx4 v{aO0}, {SA}, s99 offen lds")
    A(f"s_cmp_eq_u32 {sTY}, 0\ns_cselect_b32 s96, {P['woa1']}, {P['wob1']}")
    wo_run("s96")
    A("s_barrier")
    la, lb = lab("wa"), lab("wb")
    A(f"s_cmp_eq_u32 {sTY}, 0\ns_cbranch_scc1 {la}\ns_waitcnt vmcnt({P['wob1']+npf})\ns_branch {lb}\n{la}:\ns_waitcnt vmcnt({P['woa1']+npf})\n{lb}:")
    A(f"v_lshlrev_b32 v{XV}, 16, v{XV}\ns_mov_b32 {sMODE}, 0")
    when(f"s_cmp_eq_u32 {sW}, 4", tab_store)
    A.label("L_o_loop")
    A("s_barrier")

    def o_zero():
        def hold():
            tables()
            if P["hold"] == 2:
                poll([f"buffer_load_dwordx2 {r2(MLr)}, v{aMLr}, {WS}, {sLO} offen sc1"], lambda: A(f"v_cmp_ne_u32 vcc, -1, v{MLr}\ns_nop 1\ns_cmp_eq_u64 vcc, 0\ns_cselect_b64 vcc, -1, 0"), 1, P["sleep_t"])
            if P["hold"] == 3:
                poll([f"buffer_load_dwordx2 {r2(MLr)}, v{aMLr}, {WS}, {sLO} offen sc1"], chk([MLr]), 1, P["sleep_t"])
            A("s_barrier")
        if P["hold"]:
            when(f"s_cmp_eq_u32 {sTY}, 1", hold)
        A(f"s_setprio {P['prio_o']}")
        wo_extra()

        def b_part():
            wo_run(P["wob2"])
            A("s_setprio 0")
            A("s_barrier")
        when(f"s_cmp_eq_u32 {sTY}, 1", b_part)
    when(f"s_cmp_eq_u32 {sL}, 0", o_zero)
    A(f"s_and_b32 s96, {sL}, 1\ns_cmp_eq_u32 s96, {sTY}\ns_cbranch_scc0 L_w_next")

    def o_first():
        wo_run(16)
        A("s_setprio 0")
        tables()
        for t in range(5):
            for ks in range(2):
                for hi in range(2):
                    for pp in range(2):
                        row = 64 * ks + 32 * hi + 2 * pp
                        A(f"ds_read_b64_tr_b16 {r2(OB+16*t+8*ks+4*hi+2*pp)}, v{aT0+t if t < 4 else aTX} offset:{row*(128 if t < 4 else 16)}")
        A("s_waitcnt lgkmcnt(0)")
    when(f"s_cmp_lt_u32 {sL}, 2", o_first)
    stamp(3)
    poll([f"buffer_load_dwordx2 {r2(MLr)}, v{aMLr}, {WS}, {sLO} offen sc1"], chk([MLr, MLr + 1]), 1, P["sleep_m"])
    stamp(4)
    MQ, MM, WL = T + 1, T + 2, T + 3
    A(f"v_max_f32_dpp v{MQ}, v{MLr}, v{MLr} quad_perm:[1,0,3,2] {DPPALL}")
    A(f"v_max_f32_dpp v{MQ}, v{MQ}, v{MQ} quad_perm:[2,3,0,1] {DPPALL}")
    A(f"v_max_f32_dpp v{MM}, v{MQ}, v{MQ} row_ror:4 {DPPALL}")
    A(f"v_max_f32_dpp v{MM}, v{MM}, v{MM} row_ror:8 {DPPALL}")
    A(f"v_sub_f32 v{WL}, v{MLr}, v{MM}\nv_sub_f32 v{MQ}, v{MQ}, v{MM}\nv_exp_f32 v{WL}, v{WL}\nv_exp_f32 v{MQ}, v{MQ}")
    A(f"v_mul_f32 v{WL}, v{WL}, v{MLr+1}")
    for d in ("quad_perm:[1,0,3,2]", "quad_perm:[2,3,0,1]", "row_ror:4", "row_ror:8"):
        A(f"v_add_f32_dpp v{WL}, v{WL}, v{WL} {d} {DPPALL}")
    A(f"v_rcp_f32 v{WL}, v{WL}\nv_mul_f32 v{FQ}, v{MQ}, v{WL}")
    A.label("L_o_again")
    zero(DO, 20)
    poll([f"buffer_load_dwordx4 {r4(OA)}, v{aOM}, {WS}, {sLO} offen sc1", f"buffer_load_dwordx4 {r4(OA+4)}, v{aOM}, {WS}, {sLO} offen offset:1024 sc1"],
         chk([OA + 3, OA + 7]), 1, P["sleep_o"])
    stamp(5)

    def om(t, ks):
        A(f"{smf} {r4(DO+4*t)}, {r4(OA+4*ks)}, {r8(OB+16*t+8*ks)}, v{OI}")

    def ow(t):
        a, b = T + 2 * (t & 1), T + 2 * (t & 1) + 1
        A(f"v_mul_f32_dpp v{a}, v{FQ}, v{DO+4*t} row_newbcast:0 {DPPALL}\nv_mul_f32_dpp v{b}, v{FQ}, v{DO+4*t+1} row_newbcast:4 {DPPALL}")
        A(f"v_fmac_f32_dpp v{a}, v{FQ}, v{DO+4*t+2} row_newbcast:8 {DPPALL}\nv_fmac_f32_dpp v{b}, v{FQ}, v{DO+4*t+3} row_newbcast:12 {DPPALL}")
        A(f"v_add_f32 v{a}, v{a}, v{b}")
        A(f"ds_write_b32 v{aRW}, v{a} offset:{t*1024}")
    om(0, 0)
    om(1, 0)
    om(0, 1)
    om(1, 1)
    om(2, 0)
    om(3, 0)
    A.mark_done(list(range(DO, DO + 4)), 3)
    ow(0)
    om(2, 1)
    A(f"v_cmp_u_f32 vcc, v{T}, v{T}")
    om(3, 1)
    retry("L_o_again")
    ow(1)
    om(4, 0)
    om(4, 1)
    ow(2)
    ow(3)
    ow(4)
    stamp(6)
    A("s_waitcnt lgkmcnt(0)")

    A.label("L_rg")
    A("s_barrier")
    A(f"ds_read_b128 {r4(G)}, v{aRD}")
    A(f"s_add_u32 {sPO}, {sLO}, {LST}")

    def tree(fill=None):
        A(f"v_permlane32_swap_b32 v{G}, v{G+2}\nv_permlane32_swap_b32 v{G+1}, v{G+3}")
        A(f"v_add_f32 v{T}, v{G}, v{G+2}\nv_add_f32 v{T+1}, v{G+1}, v{G+3}")
        if fill:
            fill()
        A(f"v_permlane16_swap_b32 v{T}, v{T+1}")
        A(f"v_add_f32 v{T}, v{T}, v{T+1}")
    A("s_waitcnt lgkmcnt(0)")
    tree()
    A(f"v_add_f32_dpp v{T}, v{T}, v{T} row_ror:8 {DPPALL}")
    A(f"v_min_u32 v{T}, -2, v{T}")
    A(f"buffer_store_dword v{T}, v{aXS}, {WS}, {sXPO} offen sc1")
    stamp(7)
    l = lab("last")
    A(f"s_cmp_eq_u32 {sL}, 3\ns_cbranch_scc0 {l}\ns_cmp_eq_u32 {sK}, {sC}\ns_cbranch_scc0 L_w_next")
    A(f"s_mov_b64 {lo(PUB)}, {lo(OUT)}\ns_mov_b32 s18, 2304\ns_mov_b32 {sPO}, 0\nv_mov_b32 v{aPB}, v{aIO}")
    A.label(l)
    l = lab("nores")
    A(f"s_or_b32 s96, {sL}, {sW}\ns_cbranch_scc0 L_cs2\ns_cmp_eq_u32 {sL}, 0\ns_cbranch_scc1 {l}")
    A(f"buffer_load_dword v{XV}, v{aXR}, {WS}, {sXRO} offen sc1")
    A.label(l)
    if P["pre_g"]:
        A(f"s_sleep {P['pre_g']}")
    A.label("L_rg2")
    A(f"s_add_u32 s97, {sXRO}, {XRL}")
    poll([f"buffer_load_dwordx4 {r4(G)}, v{aXG}, {WS}, {sXPO} offen sc1"], chk([G, G + 1, G + 2, G + 3]), P["dg"], 0, P["stag_g"])
    stamp(8)
    tree(loc_test)
    A(f"v_add_f32 v{XV}, v{XV}, v{T}")
    A(f"v_add_f32_dpp v{XV}, v{T}, v{XV} row_ror:8 {DPPALL}")
    A(f"v_cvt_pk_bf16_f32 v{T}, v{XV}, v{XV}\nv_min_u32 v{T}, 0xfffefffe, v{T}")
    store_mode(f"buffer_store_short v{T}, v{aPB}, {PUB}, {sPO} offen")
    stamp(9)
    A(f"s_cmp_eq_u32 {sL}, 3\ns_cbranch_scc1 L_w_next")
    loc_test()
    A(f"v_mul_f32 v{T+3}, v{XV}, v{XV}\nv_mov_b32 v{T+2}, v{XV}")
    store_mode(f"buffer_store_dword v{XV}, v{aXR}, {WS}, s97 offen")
    A(f"v_permlane32_swap_b32 v{T+2}, v{T+3}")
    A(f"v_add_f32 v{T+4}, v{T+2}, v{T+3}\nv_add_f32 v{T+2}, v{T+2}, v{T+3}")
    A(f"v_permlane16_swap_b32 v{T+2}, v{T+4}")
    A(f"v_add_f32 v{T+2}, v{T+2}, v{T+4}")
    for d in ("quad_perm:[1,0,3,2]", "quad_perm:[2,3,0,1]"):
        A(f"v_add_f32_dpp v{T+2}, v{T+2}, v{T+2} {d} {DPPALL}")
    A(f"v_mul_f32 v{T+2}, {sHALF}, v{T+2}\nv_min_u32 v{T+2}, -2, v{T+2}")
    A("s_waitcnt vmcnt(0)")
    store_mode(f"buffer_store_dword v{T+2}, v{aSM}, {WS}, {sPO} offen")
    stamp(10)
    A.label("L_w_next")
    keep([3, 4, 5, 6, 7, 8, 9, 10])
    A(f"s_cmp_eq_u32 {sL}, 3\ns_cbranch_scc1 L_w_end")
    A(f"s_add_u32 {sL}, {sL}, 1\ns_add_u32 {sLO}, {sLO}, {LST}\ns_add_u32 {sXPO}, {sXPO}, {XPL}\ns_add_u32 {sXRO}, {sXRO}, {XRL}")
    A.settle()
    A(f"s_cmp_lt_u32 {sW}, 4\ns_cbranch_scc1 L_q_loop\ns_branch L_o_loop")
    A.label("L_w_end")
    keep([12, 13, 14, 15], False)
    dump(1, [0, 1, 2], [12, 13, 14, 15])
    dump(5, [3, 4, 5, 6, 7, 8, 9, 10], [])
    A.label("L_end")
    A("s_endpgm")
    for t in tails:
        A.raw(t)
    A.raw(f""".section .rodata,"a"
.p2align 6
.amdhsa_kernel {N}_kernel
  .amdhsa_next_free_vgpr 256
  .amdhsa_next_free_sgpr 102
  .amdhsa_accum_offset 256
  .amdhsa_group_segment_fixed_size 0
  .amdhsa_kernarg_size 104
  .amdhsa_user_sgpr_count 2
  .amdhsa_user_sgpr_kernarg_segment_ptr 1
  .amdhsa_system_sgpr_workgroup_id_x 1
.end_amdhsa_kernel""")
    return A.text()


if __name__ == "__main__":
    out = sys.argv[1]
    kw = {}
    for a in sys.argv[2:]:
        k, v = a.split("=")
        try:
            v = eval(v)
        except Exception:
            pass
        kw[k] = v
    open(out, "w").write(gen(**kw))
```

```python
import sys, struct, math
from asmlib import Asm

N = "interleave_layers__sliding_block_cached__sliding_block_cached__decode"
LST = 0x4000
QM, OM, XM, XE, SM, ML = 0x0, 0x1000, 0x3000, 0x3800, 0x3900, 0x3c00
SMB = 0x140
XP, XPL = 0x100000, 0xc000
QM2 = 0x180000
TAB = XP + 40 * 1024
XR, XRL = 0x200000, 0x2000
STAMP_OFF = 128 << 20
NST = 64
DPPALL = "row_mask:0xf bank_mask:0xf"
WO, WOX, RED = 36864, 102400, 110592
MISC = 131072
PB, MB, LOCW, VF = MISC, MISC + 1024, MISC + 1536, MISC + 1552
LDS = 133120


def f2u(x):
    return struct.unpack("<I", struct.pack("<f", x))[0]


DEF = dict(nt="nt", stamps=False, spin=0x20000, force_sc1=False, sleep_s=2, sleep_f=8, sleep_x=0, sleep_q=0, sleep_m=0, sleep_o=0,
           dg=1, stag_g=0, pre_g=9, kb1=4, woa1=10, wob1=0, wob2=12, hold=True, d0=3, sl0=8, d1=3, sl1=2, sleep_t=8, rounds=64, pf=True, cgx=4, prio_v=1, prio_o=1,
           cyc=False, strict=True, dbgst=False, amp=None)


def gen(**kw):
    P = dict(DEF)
    P.update(kw)
    nt = P["nt"]
    A = Asm(strict_dpp=P["strict"])
    uid = [0]
    tails = []

    def lab(s):
        uid[0] += 1
        return f"L_{s}_{uid[0]}"

    A.raw(f"""; persistent fused decode kernel: 8 groups x (16 weight WGs + 16 KV WGs), generated by my own script
; @launch grid=(256,1,1) block=(512,1,1) lds={LDS}
.amdgcn_target "amdgcn-amd-amdhsa--gfx950"
.text
.globl {N}_kernel
.p2align 8
.type {N}_kernel,@function
{N}_kernel:""")
    sW, sK, sIDX, sL, sLO, sLOC, sSPIN, sXPO, sXRO = "s3", "s32", "s33", "s34", "s35", "s36", "s37", "s38", "s39"
    SA, SB, XS, PUB, WS, DBG, OUT = "s[4:7]", "s[8:11]", "s[12:15]", "s[16:19]", "s[20:23]", "s[24:27]", "s[28:31]"
    pAx, pAk, pAv, pAq, pAo, pBk, pBv, pBq, pBo, pOut, pDbg = (f"s[{r}:{r+1}]" for r in (48, 50, 52, 54, 56, 60, 62, 40, 42, 44, 46))
    smf = "v_smfmac_f32_16x16x64_bf16"
    r2 = lambda r: f"v[{r}:{r+1}]"
    r4 = lambda r: f"v[{r}:{r+3}]"
    r8 = lambda r: f"v[{r}:{r+7}]"
    HIST = 255
    T = 48

    def stamp(j):
        if P["stamps"]:
            A(f"{'s_memtime' if P['cyc'] else 's_memrealtime'} s[{64+2*j}:{65+2*j}]")

    def keep(js, layer=True):
        if not P["stamps"]:
            return
        A("s_waitcnt lgkmcnt(0)")
        if layer:
            A(f"s_mul_i32 s98, {sL}, 12")
        for j in js:
            if layer:
                A(f"s_add_u32 m0, s98, {4+j}\ns_nop 0\nv_writelane_b32 v{HIST}, s{64+2*j}, m0")
            else:
                A(f"v_writelane_b32 v{HIST}, s{64+2*j}, {j-12}")

    def dump(wave, js, start, dbgs=()):
        if not P["stamps"]:
            return
        m = 0
        for L in range(4):
            for j in js:
                m |= 1 << (4 + 12 * L + j)
        for j in start:
            m |= 1 << (j - 12)
        l = lab("nost")
        A(f"s_cmp_eq_u32 {sW}, {wave}\ns_cbranch_scc0 {l}")
        A(f"s_mul_i32 s98, s2, {NST*8}\ns_add_u32 s98, s98, {STAMP_OFF}")
        A(f"v_mbcnt_lo_u32_b32 v{T}, -1, 0\nv_mbcnt_hi_u32_b32 v{T}, -1, v{T}\nv_lshlrev_b32 v{T}, 3, v{T}")
        A(f"v_mov_b32 v{T+2}, v{HIST}\nv_mov_b32 v{T+3}, 0")
        A(f"s_mov_b32 exec_lo, {m & 0xffffffff:#x}\ns_mov_b32 exec_hi, {m >> 32:#x}")
        A(f"buffer_store_dwordx2 {r2(T+2)}, v{T}, {WS}, s98 offen")
        A("s_mov_b64 exec, -1")
        for cond, lane, slot, inv in dbgs if P["dbgst"] else ():
            l2 = lab("nodb")
            if cond:
                A(f"{cond}\ns_cbranch_scc0 {l2}")
            A(f"v_readlane_b32 s98, v{HIST}, {lane}\ns_nop 3")
            if inv:
                A("s_not_b32 s98, s98")
            A(f"v_mov_b32 v{T}, s98\nv_mov_b32 v{T+1}, {slot*4}\ns_mov_b64 exec, 1\nbuffer_atomic_umax v{T}, v{T+1}, {DBG}, 0 offen sc1\ns_mov_b64 exec, -1\ns_waitcnt vmcnt(0)")
            A.label(l2)
        if P["amp"] and P["amp"][0] == wave:
            _, cond, lane, F, C0 = P["amp"]
            l2, l3 = lab("noamp"), lab("amp")
            if cond:
                A(f"{cond}\ns_cbranch_scc0 {l2}")
            A(f"v_readlane_b32 s98, v{HIST}, {lane}\ns_nop 3\ns_sub_u32 s98, s98, s88\ns_mul_i32 s98, s98, {F}\ns_add_u32 s98, s98, {C0}\ns_min_u32 s98, s98, 30000")
            A(f"{l3}:\ns_memrealtime s[96:97]\ns_waitcnt lgkmcnt(0)\ns_sub_u32 s96, s96, s88\ns_cmp_lt_u32 s96, s98\ns_cbranch_scc1 {l3}")
            A.label(l2)
        A.label(l)

    def srd(b, nrec):
        r = int(b[2:].split(":")[0])
        A(f"s_mov_b32 s{r+2}, {nrec}\ns_mov_b32 s{r+3}, 0x20000")

    def lo(b):
        r = int(b[2:].split(":")[0])
        return f"s[{r}:{r+1}]"

    def loc_test():
        if not P["force_sc1"]:
            A(f"s_cmp_eq_u32 {sLOC}, 0")

    def store_mode(instr):
        if P["force_sc1"]:
            A(instr + " sc1")
            return
        a, b = lab("sg"), lab("se")
        A(f"s_cbranch_scc1 {a}")
        n0 = A.nops
        A(instr)
        assert A.nops == n0
        A.label(b)
        tails.append(f"{a}:\n    {instr} sc1\n    s_branch {b}")

    def poll(loads, check, depth=1, sleep=0, stag=0, top=None, pre=None, alt=None):
        n = len(loads)
        top = top or lab("poll")
        done = lab("pdone")
        if pre:
            check()
            A(f"s_cbranch_vccz {done}")
        if alt:
            A(f"s_mov_b32 s99, {P['rounds']}")
        for _ in range(depth - 1):
            for l in loads:
                A(l)
            if stag:
                A(f"s_sleep {stag}")
        A.label(top)
        for l in loads:
            A(l)
        A(f"s_sub_u32 {sSPIN}, {sSPIN}, 1\ns_cmp_lt_i32 {sSPIN}, 0\ns_cbranch_scc1 {done}")
        if alt:
            A("s_sub_u32 s99, s99, 1")
            for a, b in alt:
                A(f"s_cselect_b32 {a}, {b}, {a}")
        if sleep:
            A(f"s_sleep {sleep}")
        A(f"s_waitcnt vmcnt({n*(depth-1)})")
        check()
        A(f"s_cbranch_vccnz {top}")
        A.label(done)

    def chk(regs):
        def f():
            rs = [f"v{r}" for r in regs]
            while len(rs) > 1:
                if len(rs) >= 3:
                    A(f"v_max3_u32 v{T}, {rs[0]}, {rs[1]}, {rs[2]}")
                    rs = rs[3:] + [f"v{T}"]
                else:
                    A(f"v_max_u32 v{T}, {rs[0]}, {rs[1]}")
                    rs = [f"v{T}"]
            A(f"v_cmp_eq_u32 vcc, -1, {rs[0]}")
        return f

    def retry(target):
        a, b = lab("rt"), lab("rc")
        A(f"s_cbranch_vccnz {a}")
        A.label(b)
        tails.append(f"{a}:\n    s_sub_u32 {sSPIN}, {sSPIN}, 1\n    s_cmp_lt_i32 {sSPIN}, 0\n    s_cbranch_scc1 {b}\n    s_nop 15\n    s_branch {target}")

    def xcc(r):
        A(f"s_getreg_b32 {r}, hwreg(HW_REG_XCC_ID, 0, 4)")

    def tab_store():
        xcc("s96")
        A(f"s_lshr_b32 s97, {sIDX}, 4\ns_lshl_b32 s97, s97, 10\ns_and_b32 s98, {sIDX}, 15\ns_lshl_b32 s98, s98, 2\ns_add_u32 s97, s97, s98")
        A(f"s_lshl_b32 s98, {sK}, 7\ns_add_u32 s97, s97, s98\ns_add_u32 s97, s97, {TAB}")
        A(f"v_mov_b32 v{T}, s96\nv_mov_b32 v{T+1}, 0\ns_mov_b64 exec, 1")
        A(f"buffer_store_dword v{T}, v{T+1}, {WS}, s97 offen\nbuffer_store_dword v{T}, v{T+1}, {WS}, s97 offen offset:2048 sc1")
        A("s_mov_b64 exec, -1")

    def go_poll(first):
        out = lab("flagd")
        for i in range(2):
            A(f"s_load_dwordx4 s[44:47], s[24:25], {64*(first+i)}\ns_waitcnt lgkmcnt(0)")
            A(f"s_and_b64 s[44:45], s[44:45], s[46:47]\ns_and_b32 s44, s44, s45\ns_cmp_eq_u32 s44, 0x01010101\ns_cbranch_scc1 {out}")
            A(f"s_sleep {P['sleep_f']}")
        poll([f"buffer_load_ubyte v{T+10}, v3, {DBG}, 0 offen offset:{64*first} sc1"], lambda: A(f"v_cmp_eq_u32 vcc, 0, v{T+10}"), 1, P["sleep_f"])
        A.label(out)

    def set_loc(r):
        xcc("s96")
        A(f"v_cmp_ne_u32 vcc, s96, v{r}\ns_nop 1\ns_cmp_eq_u64 vcc, 0\ns_cselect_b32 {sLOC}, 1, 0")

    def tables():
        A(f"v_and_b32 v{T+8}, 1, v4\nv_lshlrev_b32 v{T+8}, 10, v{T+8}\nv_lshl_add_u32 v{T+8}, v3, 2, v{T+8}\ns_lshl_b32 s96, {sK}, 7\ns_add_u32 s96, s96, {TAB}\ns_add_u32 s97, s96, 2048")
        poll([f"buffer_load_dword v{T+9}, v{T+8}, {WS}, s96 offen sc1"], chk([T + 9]), 1, P["sleep_t"], alt=[("s96", "s97")])
        set_loc(T + 9)

    def when(cond, fn):
        l = lab("skip")
        A(f"{cond}\ns_cbranch_scc0 {l}")
        st = A.snap()
        fn()
        A.settle()
        A.label(l)
        A.restore(st)

    def zero(a, n):
        for r in range(a, a + n, 2):
            A(f"v_mov_b64 {r2(r)}, 0")

    def swap(a, b, n):
        for r in range(n):
            A(f"v_swap_b32 v{a+r}, v{b+r}")

    def copy(dst, src, n):
        for r in range(0, n, 2):
            A(f"v_mov_b64 {r2(dst+r)}, {r2(src+r)}")

    def next_layer(loop):
        A(f"s_add_u32 {sL}, {sL}, 1\ns_add_u32 {sLO}, {sLO}, {LST}")
        A.settle()
        A(f"s_branch {loop}")

    A("s_cmp_ge_u32 s2, 256\ns_cbranch_scc1 L_end")
    A("s_load_dwordx16 s[48:63], s[0:1], 0\ns_load_dwordx8 s[40:47], s[0:1], 64\ns_load_dwordx2 s[20:21], s[0:1], 96")
    stamp(12)
    A("v_lshrrev_b32 v2, 6, v0\nv_and_b32 v1, 63, v0")
    A(f"s_and_b32 {sK}, s2, 7\ns_lshr_b32 {sIDX}, s2, 3")
    A(f"v_readfirstlane_b32 {sW}, v2")
    A("v_and_b32 v3, 15, v1\nv_lshrrev_b32 v4, 4, v1")
    srd(WS, 268435456)
    srd(DBG, 256)
    A(f"s_mov_b32 s7, 0x20000\ns_mov_b32 s11, 0x20000\ns_mov_b32 {sSPIN}, {P['spin']}\ns_lshl_b32 {sLO}, {sK}, 16\ns_mov_b32 {sL}, 0\ns_mov_b32 {sLOC}, 0")
    A(f"s_cmp_lt_u32 {sIDX}, 16\ns_cbranch_scc1 L_w")

    sG, sB, sS, sGO, sLB, sF, sWQ, sQO = "s12", "s13", "s14", "s15", "s16", "s17", "s18", "s19"
    VA = 8
    ACT, SAV = 64, 128
    A("s_mov_b32 s6, 33554432\ns_mov_b32 s10, 33554432")
    A(f"s_bfe_u32 {sG}, {sIDX}, 0x10003\ns_bfe_u32 {sB}, {sIDX}, 0x10002\ns_and_b32 {sS}, {sIDX}, 3\ns_and_b32 {sWQ}, {sW}, 3")
    A(f"s_lshl_b32 s96, {sK}, 1\ns_add_u32 s96, s96, {sG}\ns_lshl_b32 s96, s96, 20\ns_lshl_b32 s97, {sB}, 24\ns_add_u32 s96, s96, s97")
    A(f"s_lshl_b32 s97, {sS}, 16\ns_add_u32 s96, s96, s97\ns_lshl_b32 s97, {sWQ}, 14\ns_add_u32 s96, s96, s97")
    A(f"s_add_u32 {sGO}, s96, {3072*256}\ns_lshl_b32 {sLB}, {sW}, 14")
    A(f"s_cmp_lt_u32 {sW}, 4\ns_cselect_b32 s96, 3, 2")
    A(f"v_and_b32 v5, s96, v4\nv_xor_b32 v5, v5, v3\nv_lshlrev_b32 v5, 4, v5\nv_lshl_add_u32 v{VA}, v4, 8, v5")
    for x in (1, 2, 3):
        A(f"v_xor_b32 v{VA+x}, {x<<6}, v{VA}")
    A("s_waitcnt lgkmcnt(0)")
    A(f"s_cselect_b64 {lo(SA)}, {pAk}, {pAv}\ns_cselect_b64 {lo(SB)}, {pBk}, {pBv}\ns_mov_b64 {lo(DBG)}, {pDbg}")
    A("s_cbranch_scc0 L_v")

    def kv_dma(buf, isv, i0, i1):
        for i in range(i0, i1):
            if i % 4 == 0 or i == i0:
                A(f"s_add_u32 m0, {sLB}, {(i>>2)*4096}\ns_add_u32 s96, {sGO}, {(i>>2)*4096}")
            x = ((i & 1) | ((i >> 3) << 1)) if isv else (i & 3)
            A(f"buffer_load_dwordx4 v{VA+x}, {buf}, s96 offen offset:{(i&3)*1024} {nt} lds")

    XI = 40
    srd(OUT, 2304)
    A(f"s_mov_b64 {lo(OUT)}, {pAx}\ns_mul_i32 s97, {sB}, 1152\nv_lshlrev_b32 v5, 4, v1\nv_lshlrev_b32 v6, 2, v1\nv_mov_b32 v{XI+4}, 0")
    A(f"buffer_load_dwordx4 {r4(XI)}, v5, {OUT}, s97 offen\ns_mov_b32 exec_hi, 0")
    A(f"buffer_load_dword v{XI+4}, v6, {OUT}, s97 offen offset:1024\ns_mov_b32 exec_hi, -1")
    kv_dma(SA, False, 0, 16)
    A("s_barrier")
    stamp(13)
    RA, aQ, aS, aP, aM, aML, IX = 12, 16, 17, 18, 19, 20, 21
    Q, Q1, ST, C = 24, 28, 22, 32
    A(f"v_xor_b32 v5, v4, v3\nv_lshlrev_b32 v5, 4, v5\nv_lshl_add_u32 v5, v3, 8, v5\nv_add_u32 v{RA}, {sLB}, v5")
    for x in (1, 2, 3):
        A(f"v_xor_b32 v{RA+x}, {x<<6}, v{RA}")
    A(f"s_lshl_b32 s96, {sG}, 11\ns_lshl_b32 s97, {sB}, 10\ns_add_u32 s96, s96, s97\nv_lshlrev_b32 v{aQ}, 4, v1\nv_add_u32 v{aQ}, s96, v{aQ}")
    A(f"s_mul_i32 s96, {sB}, {SMB}\ns_add_u32 s96, s96, {SM}\nv_lshlrev_b32 v{aS}, 3, v1\nv_add_u32 v{aS}, s96, v{aS}")
    A("v_and_b32 v5, 2, v4\nv_lshrrev_b32 v6, 3, v3\nv_add_u32 v5, v5, v6\nv_lshlrev_b32 v5, 8, v5")
    A("v_and_b32 v6, 1, v4\nv_lshl_add_u32 v5, v6, 5, v5\nv_and_b32 v7, 7, v3\nv_lshl_add_u32 v5, v7, 2, v5")
    A(f"s_lshl_b32 s96, {sW}, 6\ns_add_u32 s96, s96, {PB}\nv_add_u32 v{aP}, s96, v5")
    A(f"s_lshl_b32 s96, {sW}, 2\ns_add_u32 s96, s96, {MB}\nv_add_u32 v5, s96, v1\nv_lshlrev_b32 v7, 2, v1\nv_add_u32 v7, {MB+64}, v7")
    A(f"v_and_b32 v{aM}, 47, v1\nv_cmp_eq_u32 vcc, 0, v{aM}\nv_cndmask_b32 v{aM}, v7, v5, vcc")
    A(f"s_lshl_b32 s96, {sG}, 9\ns_lshl_b32 s97, {sB}, 7\ns_add_u32 s96, s96, s97\ns_lshl_b32 s97, {sS}, 5\ns_add_u32 s96, s96, s97")
    A(f"s_lshl_b32 s97, {sW}, 3\ns_add_u32 s96, s96, s97\ns_add_u32 s96, s96, {ML}\nv_lshlrev_b32 v{aML}, 8, v6\nv_add_u32 v{aML}, s96, v{aML}")
    A(f"v_and_b32 v5, 1, v1\nv_mul_u32_u24 v{IX}, 0xaaaa, v5\nv_add_u32 v{IX}, 0x4444, v{IX}")
    A(f"v_mov_b64 {r2(ST)}, 0\ns_waitcnt vmcnt(16)")
    for r in range(5):
        A(f"v_dot2c_f32_bf16 v{ST}, 0x3f803f80, v{XI+r}\nv_dot2c_f32_bf16 v{ST+1}, v{XI+r}, v{XI+r}")
    A.settle()
    A("s_branch L_k_f")

    def k_read(mid=None):
        A("s_waitcnt vmcnt(0)")
        if mid:
            mid()
        for Tt in range(4):
            for x in range(4):
                A(f"ds_read_b128 {r4(ACT+16*Tt+8*(x>>1)+4*(x&1))}, v{RA+x} offset:{Tt*4096}")
        A("s_waitcnt lgkmcnt(0)")
    ql = f"buffer_load_dwordx4 {r4(Q)}, v{aQ}, {WS}, {sQO} offen sc1"
    sl = f"s_mov_b32 exec_hi, 0xff\nbuffer_load_dwordx2 {r2(ST)}, v{aS}, {WS}, {sLO} offen sc1\ns_mov_b32 exec_hi, -1"
    A.label("L_k_l1")
    k_read()
    stamp(0)
    poll([sl, ql], chk([ST, ST + 1, Q + 3]), P["d1"], P["sl1"], P["sl1"])
    A("s_branch L_k_f")
    A.label("L_k_loop")
    A(f"s_mov_b32 {sQO}, {sLO}\ns_waitcnt vmcnt(0)\nv_mov_b32 v{Q+3}, -1")
    zero(C, 16)
    A(f"s_cmp_eq_u32 {sL}, 1\ns_cbranch_scc1 L_k_l1")
    stamp(0)
    poll([sl], chk([ST, ST + 1]), 1, P["sleep_s"])
    A.label("L_k_f")
    stamp(1)
    SX, SQ = T + 2, T + 3
    A(f"v_mov_b64 {r2(SX)}, {r2(ST)}")
    A(f"v_permlane32_swap_b32 v{SX}, v{SQ}")
    A(f"v_add_f32 v{T+4}, v{SX}, v{SQ}\nv_add_f32 v{SX}, v{SX}, v{SQ}")
    A(f"v_permlane16_swap_b32 v{SX}, v{T+4}")
    A(f"v_add_f32 v{SX}, v{SX}, v{T+4}")
    for d in ("quad_perm:[1,0,3,2]", "quad_perm:[2,3,0,1]", "row_ror:4", "row_ror:8"):
        A(f"v_add_f32_dpp v{SX}, v{SX}, v{SX} {d} {DPPALL}")
    A(f"v_mul_f32 v{SX}, {f2u(1/576.0):#x}, v{SX}")
    A(f"v_readlane_b32 s96, v{SX}, 32")
    A(f"v_fma_f32 v{SQ}, -v{SX}, v{SX}, s96\nv_max_f32 v{SQ}, 0, v{SQ}")
    A(f"v_add_f32 v{SQ}, {f2u(1e-5):#x}, v{SQ}\nv_rsq_f32 v{SQ}, v{SQ}")
    A(f"v_mul_f32 v{SQ}, {f2u(128**-0.5*math.log2(math.e)):#x}, v{SQ}")
    A(f"v_readfirstlane_b32 {sF}, v{SQ}")
    A(f"s_cmp_eq_u32 {sL}, 0\ns_cbranch_scc0 L_k_q")
    go_poll(2)
    stamp(15)
    A(f"v_mov_b64 {r2(ST)}, 0\nv_lshlrev_b32 v{T+8}, 2, v3")
    zero(C, 16)
    k_read(lambda: when(f"s_cmp_eq_u32 {sW}, 0", tab_store))
    A(f"s_lshl_b32 s97, {sK}, 7\ns_add_u32 s97, s97, {TAB}\ns_add_u32 s98, s97, 2048\ns_mov_b32 {sQO}, {sLO}\ns_lshl_b32 s96, {sK}, 12\ns_add_u32 s96, s96, {QM2}")
    stamp(14)
    stamp(0)
    poll([f"buffer_load_dword v{T+12}, v{T+8}, {WS}, s97 offen sc1", ql], chk([T + 12, Q + 3]), P["d0"], P["sl0"], P["sl0"], alt=[("s97", "s98"), (sQO, "s96")])
    set_loc(T + 12)
    A(f"v_mov_b32 v{T}, {LOCW}\nv_mov_b32 v{T+1}, {sLOC}\nds_write_b32 v{T}, v{T+1}")
    A("s_branch L_k_q")
    A.label("L_k_again")
    zero(C, 16)
    A(f"v_mov_b32 v{Q+3}, -1")
    A.label("L_k_q")
    poll([ql], chk([Q + 3]), 1, P["sleep_q"], pre=True)
    stamp(2)
    KB = lambda Tt, ks: r8(ACT + 16 * Tt + 8 * ks)
    Cc = lambda Tt: C + 4 * Tt
    U0, U1, X0, X1, M0_, M1, M2, XF0, XF1 = T, T + 1, T + 2, T + 3, T + 4, T + 5, T + 6, T + 7, T + 8

    def fold(Ta, X):
        A(f"v_add_f32 v{U0}, v{Cc(Ta)}, v{Cc(Ta)+1}\nv_add_f32 v{U1}, v{Cc(Ta)+2}, v{Cc(Ta)+3}")
        yield
        A(f"v_add_f32_dpp v{U0}, v{Cc(Ta+1)}, v{Cc(Ta+1)+1} quad_perm:[0,1,2,3] row_mask:0xc bank_mask:0xf")
        A(f"v_add_f32_dpp v{U1}, v{Cc(Ta+1)+2}, v{Cc(Ta+1)+3} quad_perm:[0,1,2,3] row_mask:0xc bank_mask:0xf")
        yield
        A(f"v_permlane16_swap_b32 v{U0}, v{U1}")
        A(f"v_add_f32 v{X}, v{U0}, v{U1}")
        yield
    A(f"{smf} {r4(Cc(0))}, {r4(Q)}, {KB(0,0)}, v{IX}")
    A(f"v_mov_b32_dpp v{Q1}, v{Q} row_ror:8 {DPPALL}\nv_mov_b32_dpp v{Q1+1}, v{Q+1} row_ror:8 {DPPALL}")
    A(f"{smf} {r4(Cc(1))}, {r4(Q)}, {KB(1,1)}, v{IX}")
    A(f"v_mov_b32_dpp v{Q1+2}, v{Q+2} row_ror:8 {DPPALL}\nv_mov_b32_dpp v{Q1+3}, v{Q+3} row_ror:8 {DPPALL}")
    A(f"{smf} {r4(Cc(2))}, {r4(Q)}, {KB(2,0)}, v{IX}")
    A(f"{smf} {r4(Cc(0))}, {r4(Q1)}, {KB(0,1)}, v{IX}")
    A(f"{smf} {r4(Cc(1))}, {r4(Q1)}, {KB(1,0)}, v{IX}")
    A(f"{smf} {r4(Cc(3))}, {r4(Q)}, {KB(3,1)}, v{IX}")
    A(f"{smf} {r4(Cc(2))}, {r4(Q1)}, {KB(2,1)}, v{IX}")
    A(f"{smf} {r4(Cc(3))}, {r4(Q1)}, {KB(3,0)}, v{IX}")
    A.mark_done(list(range(Cc(0), Cc(2))), 3)
    for _ in fold(0, X0):
        pass
    for _ in fold(2, X1):
        pass
    A(f"v_max_f32 v{M0_}, v{X0}, v{X1}")
    A(f"v_cmp_u_f32 vcc, v{X0}, v{X1}\nv_mul_f32 v{XF0}, {sF}, v{X0}")
    A(f"v_max_f32_dpp v{M0_}, v{M0_}, v{M0_} quad_perm:[1,0,3,2] {DPPALL}")
    A(f"v_mul_f32 v{XF1}, {sF}, v{X1}")
    retry("L_k_again")
    A(f"v_max_f32_dpp v{M0_}, v{M0_}, v{M0_} quad_perm:[2,3,0,1] {DPPALL}")
    A(f"v_max_f32_dpp v{M0_}, v{M0_}, v{M0_} row_ror:4 {DPPALL}")
    A(f"v_max_f32_dpp v{M1}, v{M0_}, v{M0_} row_ror:8 {DPPALL}\nv_max_f32_dpp v{M0_}, v{M0_}, v{M0_} row_ror:8 {DPPALL}")
    A(f"v_permlane32_swap_b32 v{M0_}, v{M1}")
    A(f"v_max_f32 v{M0_}, v{M0_}, v{M1}")
    A(f"v_fma_f32 v{X0}, -v{M0_}, {sF}, v{XF0}\nv_fma_f32 v{X1}, -v{M0_}, {sF}, v{XF1}")
    A(f"v_exp_f32 v{X0}, v{X0}\nv_exp_f32 v{X1}, v{X1}")
    MF, LSUM = T + 10, T + 11
    A(f"v_mul_f32 v{MF}, {sF}, v{M0_}")
    A(f"v_cvt_pk_bf16_f32 v{U0}, v{X0}, v{X1}")
    A(f"ds_write_b32 v{aP}, v{U0}\nds_write_b32 v{aM}, v{MF}")
    A(f"v_add_f32 v{LSUM}, v{X0}, v{X1}")
    if P["kb1"]:
        when(f"s_cmp_eq_u32 {sL}, 0", lambda: kv_dma(SB, False, 0, P["kb1"]))
    stamp(3)
    A("s_waitcnt lgkmcnt(0)\ns_barrier")
    for d in ("quad_perm:[1,0,3,2]", "quad_perm:[2,3,0,1]", "row_ror:4"):
        A(f"v_add_f32_dpp v{LSUM}, v{LSUM}, v{LSUM} {d} {DPPALL}")
    A(f"v_add_f32_dpp v{M1}, v{LSUM}, v{LSUM} row_ror:8 {DPPALL}\nv_add_f32_dpp v{LSUM}, v{LSUM}, v{LSUM} row_ror:8 {DPPALL}")
    A(f"v_min_u32 v{MF}, -2, v{MF}")
    loc_test()
    A(f"v_permlane32_swap_b32 v{LSUM}, v{M1}")
    A(f"v_add_f32 v{LSUM}, v{LSUM}, v{M1}\nv_min_u32 v{LSUM}, -2, v{LSUM}\ns_mov_b64 exec, 0x10001")
    store_mode(f"buffer_store_dwordx2 {r2(MF)}, v{aML}, {WS}, {sLO} offen")
    A("s_mov_b64 exec, -1")
    stamp(4)
    keep([0, 1, 2, 3, 4])
    A(f"s_cmp_eq_u32 {sL}, 3\ns_cbranch_scc1 L_k_end")
    A("s_barrier")
    A(f"s_cmp_eq_u32 {sL}, 0\ns_cbranch_scc0 L_k_swap")
    kv_dma(SB, False, P["kb1"], 16)
    copy(SAV, ACT, 64)
    A("s_branch L_k_next")
    A.label("L_k_swap")
    swap(SAV, ACT, 64)
    A.label("L_k_next")
    next_layer("L_k_loop")
    A.label("L_k_end")
    keep([12, 13, 14, 15], False)
    dump(0, [0, 1, 2, 3, 4], [12, 13, 14, 15], [(None, 0, 4, True), (None, 0, 5, False)])
    A("s_endpgm")

    A.label("L_v")
    A(f"v_mov_b32 v{T}, {VF}\nv_mov_b64 {r2(T+2)}, 0\nv_mov_b64 {r2(T+4)}, 0\nds_write_b128 v{T}, {r4(T+2)}")
    RV, aPr, aMo, aMa, aO, aVF = 12, 14, 15, 16, 17, 18
    PA, MA, MO, D = 24, 28, 22, 192
    A("v_bfe_u32 v5, v1, 2, 1\nv_bfe_u32 v6, v1, 3, 1\nv_and_b32 v7, 1, v4")
    A(f"v_lshlrev_b32 v{T}, 5, v5\nv_and_b32 v{T+1}, 2, v4\nv_lshl_add_u32 v{T}, v{T+1}, 2, v{T}\nv_lshl_add_u32 v{T}, v6, 2, v{T}\nv_lshl_add_u32 v{T}, v7, 1, v{T}")
    A(f"v_lshl_add_u32 v{T+1}, v6, 1, v7\nv_lshl_add_u32 v{T+1}, v5, 2, v{T+1}\ns_lshl_b32 s96, {sWQ}, 1\nv_xor_b32 v{T+1}, s96, v{T+1}")
    A(f"v_lshlrev_b32 v{T}, 8, v{T}\nv_lshl_add_u32 v{T}, v{T+1}, 5, v{T}\nv_and_b32 v{T+1}, 3, v1\nv_lshl_add_u32 v{T}, v{T+1}, 3, v{T}")
    A(f"v_add_u32 v{RV}, 0x10000, v{T}\nv_xor_b32 v{RV+1}, 32, v{RV}")
    A(f"v_lshlrev_b32 v{aPr}, 4, v1\nv_add_u32 v{aPr}, {PB}, v{aPr}\nv_lshlrev_b32 v{aMo}, 2, v4\nv_add_u32 v{aMo}, {MB}, v{aMo}\nv_mov_b32 v{aMa}, {MB}")
    A(f"s_lshl_b32 s96, {sG}, 12\ns_lshl_b32 s97, {sWQ}, 9\ns_add_u32 s96, s96, s97\ns_and_b32 s97, {sIDX}, 7\ns_lshl_b32 s97, s97, 4\ns_add_u32 s96, s96, s97\ns_add_u32 s96, s96, {OM}")
    A(f"v_lshlrev_b32 v{aO}, 11, v7\nv_lshrrev_b32 v{T}, 1, v4\nv_lshl_add_u32 v{aO}, v{T}, 8, v{aO}\nv_lshl_add_u32 v{aO}, v6, 7, v{aO}")
    A(f"v_and_b32 v{T}, 7, v1\nv_lshl_add_u32 v{aO}, v{T}, 1, v{aO}\nv_add_u32 v{aO}, s96, v{aO}")
    A(f"s_lshl_b32 s96, {sWQ}, 2\ns_add_u32 s96, s96, {VF}\nv_mov_b32 v{aVF}, s96\nv_mov_b32 v{aVF+1}, {VF}")
    A(f"v_and_b32 v5, 1, v1\nv_mul_u32_u24 v{IX}, 0xaaaa, v5\nv_add_u32 v{IX}, 0x4444, v{IX}")
    A("s_waitcnt lgkmcnt(0)\ns_barrier")
    kv_dma(SA, True, 0, 16)
    A.settle()
    A.label("L_v_loop")

    def v_read():
        top, out = lab("vf"), lab("vfd")
        A(f"s_add_u32 s96, {sL}, 1\nv_mov_b32 v{T}, s96\ns_waitcnt vmcnt(0)\nds_write_b32 v{aVF}, v{T}")
        stamp(8)
        A.label(top)
        A(f"ds_read_b128 {r4(T+4)}, v{aVF+1}")
        A(f"s_sub_u32 {sSPIN}, {sSPIN}, 1\ns_cmp_lt_i32 {sSPIN}, 0\ns_waitcnt lgkmcnt(0)\ns_cbranch_scc1 {out}")
        A(f"v_min3_u32 v{T+1}, v{T+4}, v{T+5}, v{T+6}\nv_min_u32 v{T+1}, v{T+1}, v{T+7}\nv_cmp_gt_u32 vcc, s96, v{T+1}\ns_cbranch_vccnz {top}")
        A.label(out)
        for j in range(4):
            for u in range(2):
                for hi in range(2):
                    for pp in range(2):
                        A(f"ds_read_b64_tr_b16 {r2(ACT+16*j+8*u+4*hi+2*pp)}, v{RV+u} offset:{(64*j+16*hi+pp)*256}")
        A("s_waitcnt lgkmcnt(0)")
    when(f"s_cmp_lt_u32 {sL}, 2", v_read)
    zero(D, 32)
    if P["prio_v"]:
        A(f"s_setprio {P['prio_v']}")
    stamp(5)
    if P["stamps"]:
        A("s_waitcnt lgkmcnt(0)")
    A("s_barrier")
    A(f"ds_read_b128 {r4(PA)}, v{aPr}\nds_read_b128 {r4(MA)}, v{aMa}\nds_read_b128 {r4(MA+4)}, v{aMa} offset:16")
    A(f"ds_read2_b32 {r2(MO)}, v{aMo} offset0:0 offset1:4")
    A("s_waitcnt lgkmcnt(3)")
    Dd = lambda j, u: D + 8 * j + 4 * u
    Y = T
    AL = T + 4

    def pv(j, u):
        A(f"{smf} {r4(Dd(j,u))}, {r4(PA)}, {r8(ACT+16*j+8*u)}, v{IX}")

    def pick(j, u):
        for h in range(2):
            if j == 0:
                A(f"v_add_f32 v{Y+2*u+h}, v{Dd(j,u)+2*h}, v{Dd(j,u)+2*h+1}")
            else:
                A(f"v_add_f32_dpp v{Y+2*u+h}, v{Dd(j,u)+2*h}, v{Dd(j,u)+2*h+1} quad_perm:[0,1,2,3] row_mask:{1<<j:#x} bank_mask:0xf")
    pv(0, 0)
    A("s_waitcnt lgkmcnt(0)")
    stamp(6)
    pv(0, 1)
    A(f"v_max3_f32 v{AL}, v{MA}, v{MA+1}, v{MA+2}\nv_max3_f32 v{AL+1}, v{MA+4}, v{MA+5}, v{MA+6}\nv_max_f32 v{AL}, v{AL}, v{MA+3}")
    pv(1, 0)
    A(f"v_max_f32 v{AL+1}, v{AL+1}, v{MA+7}\nv_sub_f32 v{AL}, v{MO}, v{AL}\nv_sub_f32 v{AL+1}, v{MO+1}, v{AL+1}")
    pv(1, 1)
    A(f"v_exp_f32 v{AL}, v{AL}\nv_exp_f32 v{AL+1}, v{AL+1}")
    pv(2, 0)
    pick(0, 0)
    pv(2, 1)
    pick(0, 1)
    pv(3, 0)
    pick(1, 0)
    pv(3, 1)
    pick(1, 1)
    when(f"s_cmp_eq_u32 {sL}, 0", read_loc0 := (lambda: A(f"v_mov_b32 v{T+8}, {LOCW}\nds_read_b32 v{T+9}, v{T+8}\ns_waitcnt lgkmcnt(0)\nv_readfirstlane_b32 {sLOC}, v{T+9}")))
    pick(2, 0)
    pick(2, 1)
    loc_test()
    pick(3, 0)
    A(f"v_mul_f32 v{Y}, v{Y}, v{AL}\nv_mul_f32 v{Y+1}, v{Y+1}, v{AL+1}")
    pick(3, 1)
    A(f"v_mul_f32 v{Y+2}, v{Y+2}, v{AL}\nv_mul_f32 v{Y+3}, v{Y+3}, v{AL+1}")
    A(f"v_permlane32_swap_b32 v{Y}, v{Y+2}\nv_permlane32_swap_b32 v{Y+1}, v{Y+3}")
    A(f"v_add_f32 v{Y}, v{Y}, v{Y+2}\nv_add_f32 v{Y+1}, v{Y+1}, v{Y+3}")
    A(f"v_permlane16_swap_b32 v{Y}, v{Y+1}")
    A(f"v_add_f32 v{Y}, v{Y}, v{Y+1}")
    A(f"v_cvt_pk_bf16_f32 v{Y}, v{Y}, v{Y}\nv_min_u32 v{Y}, 0xfffefffe, v{Y}")
    store_mode(f"buffer_store_short v{Y}, v{aO}, {WS}, {sLO} offen")
    stamp(7)
    if P["prio_v"]:
        A("s_setprio 0")
    keep([5, 6, 7, 8])
    A(f"s_cmp_eq_u32 {sL}, 3\ns_cbranch_scc1 L_v_end")
    A("s_barrier")
    A(f"s_cmp_eq_u32 {sL}, 0\ns_cbranch_scc0 L_v_swap")
    kv_dma(SB, True, 0, 16)
    copy(SAV, ACT, 64)
    A("s_branch L_v_next")
    A.label("L_v_swap")
    swap(SAV, ACT, 64)
    A.label("L_v_next")
    next_layer("L_v_loop")
    A.label("L_v_end")
    dump(4, [5, 6, 7, 8], [], [(None, 12, 7, False), (None, 11, 8, False), (None, 23, 11, False)])
    A("s_endpgm")

    A.label("L_w")
    sC, sTY, sKH, sCG, sMODE, sG0, sHALF, sPO = "s100", "s101", "s58", "s59", "s60", "s61", "s62", "s63"
    A("s_mov_b32 s6, 4718592\ns_mov_b32 s10, 4718592")
    srd(XS, 2304)
    srd(OUT, 2304)
    srd(PUB, 268435456)
    A(f"s_and_b32 {sC}, {sIDX}, 7\ns_lshr_b32 {sTY}, {sIDX}, 3")
    A("v_lshrrev_b32 v5, 3, v1\nv_and_b32 v6, 7, v1\nv_lshrrev_b32 v7, 5, v1\nv_lshlrev_b32 v7, 1, v7\nv_xor_b32 v7, v7, v6")
    A(f"s_cmp_lt_u32 {sW}, 4\ns_cbranch_scc0 L_o")

    aRD, aXS, aXG, aXR, aPB, aSM, aIO, XV = 8, 9, 10, 11, 12, 13, 14, 15
    G = 16

    def rg_setup(t_scalar):
        A(t_scalar)
        A(f"s_mul_i32 s96, {sC}, 5\ns_add_u32 s96, s96, s97")
        A(f"v_lshl_add_u32 v{T}, v6, 2, v4\nv_lshlrev_b32 v{T+1}, 2, v{T}")
        A(f"s_lshl_b32 s98, s97, 10\ns_add_u32 s98, s98, {RED}\nv_lshlrev_b32 v{aXG}, 4, v1\nv_add_u32 v{aRD}, s98, v{aXG}")
        A(f"s_lshl_b32 s98, s96, 10\nv_add_u32 v{aXG}, s98, v{aXG}\ns_lshl_b32 s99, {sK}, 7\ns_add_u32 s98, s98, s99\nv_add_u32 v{aXS}, s98, v{T+1}")
        A(f"s_lshl_b32 s98, s96, 7\nv_add_u32 v{aXR}, s98, v{T+1}")
        A(f"v_lshrrev_b32 v{T+2}, 2, v6\ns_lshl_b32 s98, s96, 3\ns_add_u32 s98, s98, {SM}")
        A(f"v_mul_u32_u24 v{aSM}, {SMB}, v{T+2}\nv_lshrrev_b32 v{T+3}, 5, v1\nv_lshl_add_u32 v{aSM}, v{T+3}, 2, v{aSM}\nv_add_u32 v{aSM}, s98, v{aSM}")
        A(f"s_lshl_b32 s98, {sC}, 2\ns_add_u32 s98, s98, s97\ns_lshr_b32 s99, {sC}, 1\ns_add_u32 s99, s99, 32")
        A(f"s_cmp_eq_u32 s97, 4\ns_cselect_b32 s98, s99, s98\ns_cselect_b32 {sHALF}, 0.5, 1.0\ns_cselect_b64 vcc, -1, 0\ns_and_b32 s99, {sC}, 1")
        A(f"v_bfe_u32 v{T+3}, v{T}, 3, 1\nv_mov_b32 v{T+4}, s99\nv_cndmask_b32 v{T+3}, v{T+3}, v{T+4}, vcc")
        A(f"v_and_b32 v{T+4}, 7, v{T}\nv_lshl_add_u32 v{T+4}, v{T+3}, 3, v{T+4}\nv_lshlrev_b32 v{T+4}, 1, v{T+4}")
        A(f"s_lshl_b32 s99, s98, 5\nv_mul_u32_u24 v{aIO}, 1152, v{T+2}\nv_add3_u32 v{aIO}, v{aIO}, v{T+4}, s99")
        A("s_cmp_ge_u32 s98, 18\ns_cselect_b32 s99, 1, 0\ns_cselect_b32 s96, 18, 0\ns_sub_u32 s98, s98, s96")
        A(f"s_and_b32 s96, s98, 3\ns_lshl_b32 s96, s96, 8\ns_lshr_b32 s97, s98, 2\ns_lshl_b32 s97, s97, 6\ns_add_u32 s96, s96, s97\ns_lshl_b32 s97, s99, 10\ns_add_u32 s96, s96, s97\ns_add_u32 s96, s96, {XM}")
        A(f"s_and_b32 s97, s98, 1\ns_lshl_b32 s97, s97, 6\ns_lshl_b32 s99, s99, 7\ns_add_u32 s97, s97, s99\ns_add_u32 s97, s97, {XE}")
        A(f"s_cmp_lt_u32 s98, 16\ns_cselect_b32 s96, s96, s97\nv_lshl_add_u32 v{aPB}, v{T+2}, 5, v{T+4}\nv_add_u32 v{aPB}, s96, v{aPB}")
        A(f"s_mov_b32 {sXPO}, {XP}\ns_lshl_b32 {sXRO}, {sK}, 15\ns_add_u32 {sXRO}, {sXRO}, {XR}")

    def tr_base(dst):
        A(f"v_bfe_u32 v{T}, v1, 2, 1\nv_bfe_u32 v{T+1}, v1, 3, 1\nv_and_b32 v{T+2}, 1, v4\nv_lshrrev_b32 v{T+3}, 1, v4")
        A(f"v_lshl_add_u32 v{dst}, v{T+3}, 4, v{T}\nv_lshl_add_u32 v{dst}, v{T+2}, 2, v{dst}\nv_lshl_add_u32 v{dst}, v{T+1}, 3, v{dst}")
        A(f"v_lshl_add_u32 v{dst+1}, v{T+1}, 1, v{T+2}")

    def w_srds():
        A(f"s_mov_b64 {lo(DBG)}, {pDbg}\ns_mov_b64 {lo(XS)}, {pAx}\ns_mov_b64 {lo(OUT)}, {pOut}\ns_mov_b64 {lo(PUB)}, {lo(WS)}")

    aW, aTR, aXO, aXT, aXE, aQS, QI = 24, 25, 26, 27, 28, 29, 30
    XO, XT, XX, X0R = 32, 36, 40, 224
    DQ, EQ = 160, 176
    WQ, WSV = 64, 112
    sE = "s[56:57]"
    A(f"s_and_b32 s96, {sW}, 1\ns_lshl_b32 s96, s96, 2\nv_xor_b32 v{aW}, s96, v7\nv_lshlrev_b32 v{aW}, 4, v{aW}\nv_lshl_add_u32 v{aW}, v5, 13, v{aW}")
    A(f"s_and_b32 s98, {sIDX}, 1\ns_mul_i32 s96, s98, {288*8192}\ns_lshl_b32 s97, {sW}, 16\ns_add_u32 s96, s96, s97\ns_lshl_b32 s97, {sK}, 10\ns_add_u32 s96, s96, s97")
    A(f"s_lshr_b32 s97, {sIDX}, 1\ns_xor_b32 s97, s97, {P['cgx']}\ns_lshl_b32 s97, s97, 7\ns_add_u32 s99, s96, s97")
    A(f"v_bfe_u32 v{T}, v1, 1, 1\nv_mul_u32_u24 v{T}, 1152, v{T}\nv_and_b32 v{T+1}, 1, v1\nv_lshl_add_u32 v{T}, v{T+1}, 4, v{T}")
    A(f"v_bfe_u32 v{T+1}, v1, 2, 2\nv_lshl_add_u32 v{T+2}, v4, 5, v{T}\nv_lshl_add_u32 v{T+2}, v{T+1}, 7, v{T+2}")
    A(f"v_and_b32 v{T+3}, 1, v4\nv_lshl_add_u32 v{T+3}, v{T+3}, 5, v{T}\nv_xor_b32 v{T+1}, s98, v{T+1}\nv_and_b32 v{T+1}, 1, v{T+1}\nv_mul_u32_u24 v{T+4}, 576, v{T+1}\nv_add_u32 v{T+3}, v{T+3}, v{T+4}")
    A(f"s_mul_i32 s96, s98, 576\ns_sub_u32 s97, 576, s96")
    zero(X0R + 8, 4)
    A("s_waitcnt lgkmcnt(0)")
    A(f"s_mov_b64 {lo(SA)}, {pAq}\ns_mov_b64 {lo(SB)}, {pBq}")
    w_srds()
    A(f"s_mov_b32 {sKH}, s98\ns_lshr_b32 {sCG}, {sIDX}, 1\ns_xor_b32 {sCG}, {sCG}, {P['cgx']}\ns_mov_b32 {sG0}, s99\ns_mov_b32 s56, 0x000f000f\ns_mov_b32 s57, 0x00ff00ff")

    def wq_dma(buf):
        A(f"s_lshl_b32 s98, {sW}, 10")
        for t in range(9):
            A(f"s_add_u32 m0, s98, {t*4096}\ns_add_u32 s99, {sG0}, {t*32*8192}")
            A(f"buffer_load_dwordx4 v{aW}, {buf}, s99 offen {nt} lds")
    isclr = "s_and_b32 s99, s2, 0xc6\ns_cmp_eq_u32 s99, 0x40"
    when(isclr, lambda: A("s_barrier"))
    wq_dma(SA)
    A(f"buffer_load_dwordx4 {r4(X0R)}, v{T+2}, {XS}, s96 offen\nbuffer_load_dwordx4 {r4(X0R+4)}, v{T+2}, {XS}, s97 offen")
    A(f"s_mov_b64 exec, {sE}\nbuffer_load_dwordx4 {r4(X0R+8)}, v{T+3}, {XS}, 0 offen offset:512\ns_mov_b64 exec, -1")
    A("s_barrier")
    stamp(13)
    A(f"v_and_b32 v{aXE}, 3, v1\nv_lshlrev_b32 v{aXE}, 4, v{aXE}\nv_lshl_add_u32 v{aXE}, v{T+1}, 7, v{aXE}\nv_and_b32 v{T+5}, 1, v4\nv_lshl_add_u32 v{aXE}, v{T+5}, 6, v{aXE}\nv_add_u32 v{aXE}, {XE}, v{aXE}")
    A(f"s_lshl_b32 s96, {sKH}, 10\ns_add_u32 s96, s96, {XM}\nv_lshlrev_b32 v{aXO}, 4, v1\nv_add_u32 v{aXO}, s96, v{aXO}\nv_xor_b32 v{aXT}, 0x400, v{aXO}")
    A(f"s_lshr_b32 s96, {sCG}, 2\ns_lshl_b32 s96, s96, 11\ns_lshl_b32 s97, {sW}, 8\ns_add_u32 s96, s96, s97\ns_and_b32 s97, {sCG}, 1\ns_lshl_b32 s97, s97, 7\ns_add_u32 s96, s96, s97")
    A(f"s_lshl_b32 s97, {sKH}, 6\ns_add_u32 s96, s96, s97\ns_and_b32 s97, {sCG}, 2\ns_lshl_b32 s97, s97, 4\ns_add_u32 s96, s96, s97")
    A(f"v_and_b32 v{QI}, 1, v1\nv_lshlrev_b32 v{aQS}, 1, v{QI}\nv_and_b32 v{T+5}, 12, v1\nv_add_u32 v{aQS}, v{aQS}, v{T+5}\nv_bfe_u32 v{T+5}, v1, 1, 1\nv_lshl_add_u32 v{aQS}, v{T+5}, 4, v{aQS}")
    A(f"v_lshrrev_b32 v{T+5}, 5, v1\nv_lshl_add_u32 v{aQS}, v{T+5}, 10, v{aQS}\nv_add_u32 v{aQS}, s96, v{aQS}")
    A(f"v_mul_u32_u24 v{QI}, 0xaaaa, v{QI}\nv_add_u32 v{QI}, 0x4444, v{QI}")
    tr_base(T + 8)
    A(f"v_xor_b32 v{T+9}, {sW}, v{T+9}\nv_lshlrev_b32 v{aTR}, 7, v{T+8}\nv_lshl_add_u32 v{aTR}, v{T+9}, 5, v{aTR}\nv_and_b32 v{T}, 3, v1\nv_lshl_add_u32 v{aTR}, v{T}, 3, v{aTR}")
    rg_setup("s_mov_b32 s97, 4")
    A(f"buffer_load_ushort v{XV}, v{aIO}, {XS}, 0 offen")

    def q_flags():
        A("s_waitcnt vmcnt(12)")
        go_poll(0)
        stamp(15)
    when(f"s_cmp_eq_u32 {sW}, 1", q_flags)
    A("s_waitcnt vmcnt(0) lgkmcnt(0)")
    stamp(14)
    A(f"v_lshlrev_b32 v{XV}, 16, v{XV}\ns_mov_b32 {sLOC}, 1")
    A("s_barrier")

    def colsum(mode):
        for st in range(5):
            for hi in range(2 if st < 4 else 1):
                for pp in range(2):
                    A(f"ds_read_b64_tr_b16 {r2(WQ+8*st+4*hi+2*pp)}, v{aTR} offset:{(64*st+32*hi+2*pp)*128}")
        zero(WQ + 36, 8)
        zero(DQ, 20)
        zero(XT, 8)
        A(f"v_mov_b32 v{T}, 0x3f803f80")
        for r in range(4):
            A(f"v_mov_b32 v{XO+r}, v{T}")
        A("s_mov_b64 exec, 0x000f000f")
        for r in range(4):
            A(f"v_mov_b32 v{XX+r}, v{T}")
        A(f"s_mov_b64 exec, -1\ns_mov_b32 {sMODE}, {mode}\ns_waitcnt lgkmcnt(0)")
        A.settle()
        A("s_branch L_q_go")
        A.label(f"L_q_cs{mode}")
        A(f"s_mov_b32 {sMODE}, 0")
    colsum(1)
    copy(XO, X0R, 12)
    zero(DQ, 20)
    A.settle()
    A("s_branch L_q_go")
    A.label("L_q_loop")
    zero(DQ, 20)
    stamp(0)
    poll([f"buffer_load_dwordx4 {r4(XO)}, v{aXO}, {WS}, {sLO} offen sc1", f"buffer_load_dwordx4 {r4(XT)}, v{aXT}, {WS}, {sLO} offen sc1",
          f"s_mov_b64 exec, {sE}\nbuffer_load_dwordx4 {r4(XX)}, v{aXE}, {WS}, {sLO} offen sc1\ns_mov_b64 exec, -1"],
         chk([XO + 3, XT + 3, XX + 3]), 1, P["sleep_x"])
    A.label("L_q_go")
    stamp(1)
    E0, E1, Y0, Y1, Y2 = T, T + 1, T + 2, T + 3, T + 4
    A(f"{smf} {r4(EQ)}, {r4(XX)}, {r8(WQ+32)}, v{QI}")
    A(f"{smf} {r4(DQ)}, {r4(XO)}, {r8(WQ)}, v{QI}")
    A(f"{smf} {r4(EQ)}, {r4(XO)}, {r8(WQ+36)}, v{QI}")
    A(f"{smf} {r4(DQ+4)}, {r4(XO)}, {r8(WQ+8)}, v{QI}")
    A(f"{smf} {r4(EQ)}, {r4(XT)}, {r8(WQ+36)}, v{QI}")
    A(f"{smf} {r4(DQ+8)}, {r4(XO)}, {r8(WQ+16)}, v{QI}")
    A(f"{smf} {r4(DQ+12)}, {r4(XO)}, {r8(WQ+24)}, v{QI}")
    A.mark_done(list(range(DQ, DQ + 8)), 3)

    def qpick(j):
        for b_ in range(2):
            if j == 0:
                A(f"v_add_f32 v{Y0+b_}, v{DQ+2*b_}, v{DQ+2*b_+1}")
            else:
                A(f"v_add_f32_dpp v{Y0+b_}, v{DQ+4*j+2*b_}, v{DQ+4*j+2*b_+1} quad_perm:[0,1,2,3] row_mask:{1<<j:#x} bank_mask:0xf")
    qpick(0)
    qpick(1)
    A.mark_done(list(range(EQ, EQ + 4)), 2, 4)
    A(f"v_add_f32 v{E0}, v{EQ}, v{EQ+1}\nv_add_f32 v{E1}, v{EQ+2}, v{EQ+3}")
    qpick(2)
    qpick(3)
    A(f"v_add_f32 v{Y0}, v{Y0}, v{E0}\nv_add_f32 v{Y1}, v{Y1}, v{E1}")
    A(f"v_cmp_u_f32 vcc, v{E0}, v{E1}\ns_cmp_eq_u32 {sMODE}, 0")
    A(f"v_permlane32_swap_b32 v{Y0}, v{Y1}")
    A(f"v_add_f32 v{Y2}, v{Y0}, v{Y1}\nv_add_f32 v{Y0}, v{Y0}, v{Y1}")
    A("s_cbranch_scc0 L_q_cs")
    retry("L_q_again")
    A(f"v_permlane16_swap_b32 v{Y0}, v{Y2}")
    loc_test()
    A(f"v_add_f32 v{Y0}, v{Y0}, v{Y2}")
    A(f"v_cvt_pk_bf16_f32 v{Y0}, v{Y0}, v{Y0}\nv_min_u32 v{Y0}, 0xfffefffe, v{Y0}")
    store_mode(f"buffer_store_short v{Y0}, v{aQS}, {WS}, {sLO} offen")
    stamp(2)
    A("s_barrier")
    keep([0, 1, 2])
    A(f"s_cmp_eq_u32 {sL}, 0\ns_cbranch_scc0 L_q_swap")
    A(f"s_lshl_b32 s96, {sK}, 12\ns_add_u32 s96, s96, {QM2}\ns_mov_b32 exec_lo, 0xffff\ns_mov_b32 exec_hi, 0xffff")
    A(f"buffer_store_short v{Y0}, v{aQS}, {WS}, s96 offen sc1\ns_mov_b64 exec, -1")
    if P["hold"]:
        when(f"s_cmp_eq_u32 {sTY}, 1", lambda: A("s_barrier"))
    wq_dma(SB)
    copy(WSV, WQ, 44)
    tables()
    A(f"s_or_b32 s96, {sW}, {sTY}\ns_cbranch_scc0 L_rg")
    A("s_barrier")
    A.label("L_cs2")
    colsum(2)
    zero(XX, 4)
    A(f"s_or_b32 s96, {sW}, {sTY}\ns_cbranch_scc0 L_rg2\ns_branch L_w_next")
    A.label("L_q_swap")
    swap(WQ, WSV, 44)
    A(f"s_and_b32 s96, {sL}, 1\ns_cmp_eq_u32 s96, {sTY}\ns_cbranch_scc0 L_w_next")
    A(f"s_cmp_eq_u32 {sW}, 0\ns_cbranch_scc1 L_rg")
    A("s_barrier")
    A("s_branch L_w_next")
    A.label("L_q_again")
    A(f"s_cmp_eq_u32 {sL}, 0\ns_cbranch_scc0 L_q_loop")
    A(f"s_mov_b32 {sSPIN}, -1")
    zero(DQ, 20)
    A.settle()
    A("s_branch L_q_go")
    A.label("L_q_cs")
    A("s_nop 1")
    A(f"v_permlane16_swap_b32 v{Y0}, v{Y2}")
    A(f"v_add_f32 v{Y0}, v{Y0}, v{Y2}\nv_mul_f32 v{Y0}, {f2u(-1/576.0):#x}, v{Y0}\nv_cvt_pk_bf16_f32 v{Y0}, v{Y0}, v{Y0}")
    A.settle()
    for r in range(8):
        A(f"v_mov_b32 v{WQ+36+r}, v{Y0}")
    A(f"s_cmp_eq_u32 {sMODE}, 1\ns_cbranch_scc1 L_q_cs1\ns_branch L_q_cs2")

    A.label("L_o")
    aO0, aOX, aT0, aTX, aOM, aMLr, aRW, OI = 24, 26, 28, 27, 32, 33, 34, 35
    OA, MLr, FQ, DO, OB = 36, 44, 46, 160, 64
    sH = "s58"
    A(f"v_lshlrev_b32 v{aO0}, 4, v7\nv_mul_u32_u24 v{T}, 1152, v5\nv_xor_b32 v{aO0+1}, 64, v{aO0}\nv_add_u32 v{aO0}, v{aO0}, v{T}\nv_add_u32 v{aO0+1}, v{aO0+1}, v{T}")
    A(f"v_mul_u32_u24 v{aOX}, 1152, v1")
    A("s_waitcnt lgkmcnt(0)")
    A(f"s_cmp_eq_u32 {sTY}, 0\ns_cselect_b64 {lo(SA)}, {pAo}, {pBo}")
    w_srds()

    MK = 36

    for r in range(4):
        A(f"v_mov_b32 v{MK+r}, -1")
    A(f"v_lshlrev_b32 v{MK+4}, 4, v1\nv_lshlrev_b32 v{MK+5}, 4, v6\nv_lshl_add_u32 v{MK+5}, v5, 10, v{MK+5}")

    def marks():
        def first():
            la, lb = lab("fa"), lab("fb")
            A(f"s_cmp_eq_u32 {sK}, 0\ns_cbranch_scc0 {la}")
            A(f"s_lshl_b32 s96, {sC}, 16\ns_lshl_b32 s97, {sC}, 12\ns_add_u32 s97, s97, {QM2}")
            for so in ("s96", "s97"):
                for i in range(4):
                    A(f"buffer_store_dwordx4 {r4(MK)}, v{MK+4}, {WS}, {so} offen offset:{i*1024} sc1")
            A(f"s_branch {lb}")
            A.label(la)
            A(f"s_lshl_b32 s97, {sC}, 7\ns_add_u32 s97, s97, {XP}")
            for i in range(6):
                A(f"buffer_store_dwordx4 {r4(MK)}, v{MK+5}, {WS}, s97 offen sc1")
                if i < 5:
                    A("s_add_u32 s97, s97, 8192")
            A.label(lb)
        when(isclr, first)

    def clears():
        def own():
            A(f"s_lshl_b32 s96, {sIDX}, 12\ns_add_u32 s96, s96, {sLO}")
            for i in range(4):
                A(f"buffer_store_dwordx4 {r4(MK)}, v{MK+4}, {WS}, s96 offen offset:{i*1024} sc1")
        when(f"s_cmp_lg_u32 {sIDX}, 0", own)
        A(f"s_mul_i32 s96, {sC}, 5120\ns_mul_i32 s97, {sTY}, {XPL}\ns_add_u32 s96, s96, s97\ns_lshl_b32 s97, {sK}, 7\ns_add_u32 s96, s96, s97\ns_add_u32 s96, s96, {XP}\ns_add_u32 s97, s96, {2*XPL}")
        A("s_mov_b32 exec_hi, 0xff")
        A(f"buffer_store_dwordx4 {r4(MK)}, v{MK+5}, {WS}, s96 offen sc1\nbuffer_store_dwordx4 {r4(MK)}, v{MK+5}, {WS}, s97 offen sc1")
        A("s_mov_b32 exec_hi, -1")
    when(f"s_cmp_eq_u32 {sW}, 4", marks)
    A(f"s_sub_u32 {sH}, {sW}, 4\ns_lshl_b32 s96, {sK}, 2\ns_add_u32 s96, s96, {sH}\ns_mul_i32 {sG0}, s96, {128*1152}")
    rg_setup(f"s_mov_b32 s97, {sH}")
    tr_base(T + 8)
    A(f"s_lshl_b32 s96, {sH}, 14\ns_add_u32 s96, s96, {WO}\nv_lshlrev_b32 v{aT0}, 7, v{T+8}\nv_lshl_add_u32 v{aT0}, v{T+9}, 5, v{aT0}\nv_and_b32 v{T}, 3, v1")
    A(f"v_lshl_add_u32 v{aT0}, v{T}, 3, v{aT0}\nv_add_u32 v{aT0}, s96, v{aT0}")
    for t in (1, 2, 3):
        A(f"v_xor_b32 v{aT0+t}, {t<<5}, v{aT0}")
    A(f"s_lshl_b32 s96, {sH}, 11\ns_add_u32 s97, s96, {WOX}\nv_and_b32 v{T}, 1, v1\nv_lshlrev_b32 v{aTX}, 3, v{T}\nv_lshl_add_u32 v{aTX}, v{T+8}, 4, v{aTX}\nv_add_u32 v{aTX}, s97, v{aTX}")
    A(f"s_add_u32 s96, s96, {OM}\nv_lshlrev_b32 v{aOM}, 4, v1\nv_add_u32 v{aOM}, s96, v{aOM}")
    A(f"s_lshl_b32 s96, {sH}, 8\ns_add_u32 s97, s96, {ML}\nv_and_b32 v{T}, 31, v1\nv_lshlrev_b32 v{aMLr}, 3, v{T}\nv_add_u32 v{aMLr}, s97, v{aMLr}")
    A(f"s_add_u32 s96, s96, {RED}\nv_lshlrev_b32 v{aRW}, 2, v1\nv_add_u32 v{aRW}, s96, v{aRW}")
    A(f"v_bfe_u32 v{OI}, v1, 3, 1\nv_mul_u32_u24 v{OI}, 0xaaaa, v{OI}\nv_add_u32 v{OI}, 0x4444, v{OI}")

    sWI, sWM, sWS = "s59", "s56", "s57"

    def post():
        A(f"v_mov_b32 v{T}, 1\nv_lshlrev_b32 v{T+1}, 6, v1\ns_mov_b64 exec, 15\ns_lshl_b32 s96, {sC}, 1\ns_add_u32 s96, s96, {sK}\ns_waitcnt vmcnt(0)")
        A(f"buffer_store_byte v{T}, v{T+1}, {DBG}, s96 offen sc1")
        A("s_mov_b64 exec, -1")

    def first_a():
        when(f"s_cmp_eq_u32 {sW}, 4", post)
        A("s_barrier")
    when(isclr, first_a)
    A("s_barrier")
    when(f"s_cmp_eq_u32 {sW}, 4", clears)
    A(f"buffer_load_ushort v{XV}, v{aIO}, {XS}, 0 offen")
    A(f"s_mov_b32 {sWI}, 0\ns_lshl_b32 {sWM}, {sH}, 14\ns_add_u32 {sWM}, {sWM}, {WO}\ns_lshl_b32 {sWS}, {sC}, 7\ns_add_u32 {sWS}, {sWS}, {sG0}")

    def wo_run(lim):
        top, out = lab("wo"), lab("wod")
        A.label(top)
        A(f"s_cmp_ge_u32 {sWI}, {lim}\ns_cbranch_scc1 {out}")
        for e in range(2):
            A(f"s_mov_b32 m0, {sWM}\ns_add_u32 {sWM}, {sWM}, 1024")
            A(f"buffer_load_dwordx4 v{aO0+e}, {SA}, {sWS} offen {nt} lds")
            A(f"s_add_u32 {sWS}, {sWS}, {8*1152}")
        A(f"s_add_u32 {sWI}, {sWI}, 2\ns_branch {top}")
        A.label(out)

    def wo_extra():
        A(f"s_lshl_b32 s98, {sH}, 11\ns_lshl_b32 s97, {sC}, 4\ns_add_u32 s97, s97, {sG0}")
        for e in range(2):
            A(f"s_add_u32 m0, s98, {WOX+e*1024}\ns_add_u32 s99, s97, {e*64*1152+1024}")
            A(f"buffer_load_dwordx4 v{aOX}, {SA}, s99 offen lds")
    npf = 2 if P["pf"] else 0
    A(f"s_lshl_b32 s96, {sK}, 5\ns_lshl_b32 s97, {sC}, 2\ns_add_u32 s96, s96, s97\ns_add_u32 s96, s96, {sH}\ns_mul_i32 s96, s96, {16*1152}\ns_lshl_b32 s98, {sH}, 11")
    for e in range(npf):
        A(f"s_add_u32 m0, s98, {WOX+e*1024}\ns_add_u32 s99, s96, {e*8*1152+1024}")
        A(f"buffer_load_dwordx4 v{aO0}, {SA}, s99 offen lds")
    A(f"s_cmp_eq_u32 {sTY}, 0\ns_cselect_b32 s96, {P['woa1']}, {P['wob1']}")
    wo_run("s96")
    A("s_barrier")
    la, lb = lab("wa"), lab("wb")
    A(f"s_cmp_eq_u32 {sTY}, 0\ns_cbranch_scc1 {la}\ns_waitcnt vmcnt({P['wob1']+npf})\ns_branch {lb}\n{la}:\ns_waitcnt vmcnt({P['woa1']+npf})\n{lb}:")
    A(f"v_lshlrev_b32 v{XV}, 16, v{XV}\ns_mov_b32 {sMODE}, 0")
    when(f"s_cmp_eq_u32 {sW}, 4", tab_store)
    A.label("L_o_loop")
    A("s_barrier")

    def o_zero():
        def hold():
            tables()
            if P["hold"] == 2:
                poll([f"buffer_load_dwordx2 {r2(MLr)}, v{aMLr}, {WS}, {sLO} offen sc1"], lambda: A(f"v_cmp_ne_u32 vcc, -1, v{MLr}\ns_nop 1\ns_cmp_eq_u64 vcc, 0\ns_cselect_b64 vcc, -1, 0"), 1, P["sleep_t"])
            if P["hold"] == 3:
                poll([f"buffer_load_dwordx2 {r2(MLr)}, v{aMLr}, {WS}, {sLO} offen sc1"], chk([MLr]), 1, P["sleep_t"])
            A("s_barrier")
        if P["hold"]:
            when(f"s_cmp_eq_u32 {sTY}, 1", hold)
        A(f"s_setprio {P['prio_o']}")
        wo_extra()

        def b_part():
            wo_run(P["wob2"])
            A("s_setprio 0")
            A("s_barrier")
        when(f"s_cmp_eq_u32 {sTY}, 1", b_part)
    when(f"s_cmp_eq_u32 {sL}, 0", o_zero)
    A(f"s_and_b32 s96, {sL}, 1\ns_cmp_eq_u32 s96, {sTY}\ns_cbranch_scc0 L_w_next")

    def o_first():
        wo_run(16)
        A("s_setprio 0")
        tables()
        for t in range(5):
            for ks in range(2):
                for hi in range(2):
                    for pp in range(2):
                        row = 64 * ks + 32 * hi + 2 * pp
                        A(f"ds_read_b64_tr_b16 {r2(OB+16*t+8*ks+4*hi+2*pp)}, v{aT0+t if t < 4 else aTX} offset:{row*(128 if t < 4 else 16)}")
        A("s_waitcnt lgkmcnt(0)")
    when(f"s_cmp_lt_u32 {sL}, 2", o_first)
    stamp(3)
    poll([f"buffer_load_dwordx2 {r2(MLr)}, v{aMLr}, {WS}, {sLO} offen sc1"], chk([MLr, MLr + 1]), 1, P["sleep_m"])
    stamp(4)
    MQ, MM, WL = T + 1, T + 2, T + 3
    A(f"v_max_f32_dpp v{MQ}, v{MLr}, v{MLr} quad_perm:[1,0,3,2] {DPPALL}")
    A(f"v_max_f32_dpp v{MQ}, v{MQ}, v{MQ} quad_perm:[2,3,0,1] {DPPALL}")
    A(f"v_max_f32_dpp v{MM}, v{MQ}, v{MQ} row_ror:4 {DPPALL}")
    A(f"v_max_f32_dpp v{MM}, v{MM}, v{MM} row_ror:8 {DPPALL}")
    A(f"v_sub_f32 v{WL}, v{MLr}, v{MM}\nv_sub_f32 v{MQ}, v{MQ}, v{MM}\nv_exp_f32 v{WL}, v{WL}\nv_exp_f32 v{MQ}, v{MQ}")
    A(f"v_mul_f32 v{WL}, v{WL}, v{MLr+1}")
    for d in ("quad_perm:[1,0,3,2]", "quad_perm:[2,3,0,1]", "row_ror:4", "row_ror:8"):
        A(f"v_add_f32_dpp v{WL}, v{WL}, v{WL} {d} {DPPALL}")
    A(f"v_rcp_f32 v{WL}, v{WL}\nv_mul_f32 v{FQ}, v{MQ}, v{WL}")
    A.label("L_o_again")
    zero(DO, 20)
    poll([f"buffer_load_dwordx4 {r4(OA)}, v{aOM}, {WS}, {sLO} offen sc1", f"buffer_load_dwordx4 {r4(OA+4)}, v{aOM}, {WS}, {sLO} offen offset:1024 sc1"],
         chk([OA + 3, OA + 7]), 1, P["sleep_o"])
    stamp(5)

    def om(t, ks):
        A(f"{smf} {r4(DO+4*t)}, {r4(OA+4*ks)}, {r8(OB+16*t+8*ks)}, v{OI}")

    def ow(t):
        a, b = T + 2 * (t & 1), T + 2 * (t & 1) + 1
        A(f"v_mul_f32_dpp v{a}, v{FQ}, v{DO+4*t} row_newbcast:0 {DPPALL}\nv_mul_f32_dpp v{b}, v{FQ}, v{DO+4*t+1} row_newbcast:4 {DPPALL}")
        A(f"v_fmac_f32_dpp v{a}, v{FQ}, v{DO+4*t+2} row_newbcast:8 {DPPALL}\nv_fmac_f32_dpp v{b}, v{FQ}, v{DO+4*t+3} row_newbcast:12 {DPPALL}")
        A(f"v_add_f32 v{a}, v{a}, v{b}")
        A(f"ds_write_b32 v{aRW}, v{a} offset:{t*1024}")
    om(0, 0)
    om(1, 0)
    om(0, 1)
    om(1, 1)
    om(2, 0)
    om(3, 0)
    A.mark_done(list(range(DO, DO + 4)), 3)
    ow(0)
    om(2, 1)
    A(f"v_cmp_u_f32 vcc, v{T}, v{T}")
    om(3, 1)
    retry("L_o_again")
    ow(1)
    om(4, 0)
    om(4, 1)
    ow(2)
    ow(3)
    ow(4)
    stamp(6)
    A("s_waitcnt lgkmcnt(0)")

    A.label("L_rg")
    A("s_barrier")
    A(f"ds_read_b128 {r4(G)}, v{aRD}")
    A(f"s_add_u32 {sPO}, {sLO}, {LST}")

    def tree(fill=None):
        A(f"v_permlane32_swap_b32 v{G}, v{G+2}\nv_permlane32_swap_b32 v{G+1}, v{G+3}")
        A(f"v_add_f32 v{T}, v{G}, v{G+2}\nv_add_f32 v{T+1}, v{G+1}, v{G+3}")
        if fill:
            fill()
        A(f"v_permlane16_swap_b32 v{T}, v{T+1}")
        A(f"v_add_f32 v{T}, v{T}, v{T+1}")
    A("s_waitcnt lgkmcnt(0)")
    tree()
    A(f"v_add_f32_dpp v{T}, v{T}, v{T} row_ror:8 {DPPALL}")
    A(f"v_min_u32 v{T}, -2, v{T}")
    A(f"buffer_store_dword v{T}, v{aXS}, {WS}, {sXPO} offen sc1")
    stamp(7)
    l = lab("last")
    A(f"s_cmp_eq_u32 {sL}, 3\ns_cbranch_scc0 {l}\ns_cmp_eq_u32 {sK}, {sC}\ns_cbranch_scc0 L_w_next")
    A(f"s_mov_b64 {lo(PUB)}, {lo(OUT)}\ns_mov_b32 s18, 2304\ns_mov_b32 {sPO}, 0\nv_mov_b32 v{aPB}, v{aIO}")
    A.label(l)
    l = lab("nores")
    A(f"s_or_b32 s96, {sL}, {sW}\ns_cbranch_scc0 L_cs2\ns_cmp_eq_u32 {sL}, 0\ns_cbranch_scc1 {l}")
    A(f"buffer_load_dword v{XV}, v{aXR}, {WS}, {sXRO} offen sc1")
    A.label(l)
    if P["pre_g"]:
        A(f"s_sleep {P['pre_g']}")
    A.label("L_rg2")
    A(f"s_add_u32 s97, {sXRO}, {XRL}")
    poll([f"buffer_load_dwordx4 {r4(G)}, v{aXG}, {WS}, {sXPO} offen sc1"], chk([G, G + 1, G + 2, G + 3]), P["dg"], 0, P["stag_g"])
    stamp(8)
    tree(loc_test)
    A(f"v_add_f32 v{XV}, v{XV}, v{T}")
    A(f"v_add_f32_dpp v{XV}, v{T}, v{XV} row_ror:8 {DPPALL}")
    A(f"v_cvt_pk_bf16_f32 v{T}, v{XV}, v{XV}\nv_min_u32 v{T}, 0xfffefffe, v{T}")
    store_mode(f"buffer_store_short v{T}, v{aPB}, {PUB}, {sPO} offen")
    stamp(9)
    A(f"s_cmp_eq_u32 {sL}, 3\ns_cbranch_scc1 L_w_next")
    loc_test()
    A(f"v_mul_f32 v{T+3}, v{XV}, v{XV}\nv_mov_b32 v{T+2}, v{XV}")
    store_mode(f"buffer_store_dword v{XV}, v{aXR}, {WS}, s97 offen")
    A(f"v_permlane32_swap_b32 v{T+2}, v{T+3}")
    A(f"v_add_f32 v{T+4}, v{T+2}, v{T+3}\nv_add_f32 v{T+2}, v{T+2}, v{T+3}")
    A(f"v_permlane16_swap_b32 v{T+2}, v{T+4}")
    A(f"v_add_f32 v{T+2}, v{T+2}, v{T+4}")
    for d in ("quad_perm:[1,0,3,2]", "quad_perm:[2,3,0,1]"):
        A(f"v_add_f32_dpp v{T+2}, v{T+2}, v{T+2} {d} {DPPALL}")
    A(f"v_mul_f32 v{T+2}, {sHALF}, v{T+2}\nv_min_u32 v{T+2}, -2, v{T+2}")
    A("s_waitcnt vmcnt(0)")
    store_mode(f"buffer_store_dword v{T+2}, v{aSM}, {WS}, {sPO} offen")
    stamp(10)
    A.label("L_w_next")
    keep([3, 4, 5, 6, 7, 8, 9, 10])
    A(f"s_cmp_eq_u32 {sL}, 3\ns_cbranch_scc1 L_w_end")
    A(f"s_add_u32 {sL}, {sL}, 1\ns_add_u32 {sLO}, {sLO}, {LST}\ns_add_u32 {sXPO}, {sXPO}, {XPL}\ns_add_u32 {sXRO}, {sXRO}, {XRL}")
    A.settle()
    A(f"s_cmp_lt_u32 {sW}, 4\ns_cbranch_scc1 L_q_loop\ns_branch L_o_loop")
    A.label("L_w_end")
    keep([12, 13, 14, 15], False)
    dump(1, [0, 1, 2], [12, 13, 14, 15], [(None, 0, 4, True), (None, 0, 5, False), (None, 6, 6, False), (None, 2, 15, False)])
    ta, tb = f"s_cmp_eq_u32 {sTY}, 0", f"s_cmp_eq_u32 {sTY}, 1"
    dump(5, [3, 4, 5, 6, 7, 8, 9, 10], [], [(ta, 11, 9, False), (ta, 13, 10, False), (tb, 25, 12, False), (ta, 37, 13, False), (f"s_add_u32 s98, {sK}, 8\ns_cmp_eq_u32 s98, {sIDX}", 49, 14, False)])
    A.label("L_end")
    A("s_endpgm")
    for t in tails:
        A.raw(t)
    A.raw(f""".section .rodata,"a"
.p2align 6
.amdhsa_kernel {N}_kernel
  .amdhsa_next_free_vgpr 256
  .amdhsa_next_free_sgpr 102
  .amdhsa_accum_offset 256
  .amdhsa_group_segment_fixed_size 0
  .amdhsa_kernarg_size 104
  .amdhsa_user_sgpr_count 2
  .amdhsa_user_sgpr_kernarg_segment_ptr 1
  .amdhsa_system_sgpr_workgroup_id_x 1
.end_amdhsa_kernel""")
    return A.text()


if __name__ == "__main__":
    out = sys.argv[1]
    kw = {}
    for a in sys.argv[2:]:
        k, v = a.split("=")
        try:
            v = eval(v)
        except Exception:
            pass
        kw[k] = v
    open(out, "w").write(gen(**kw))
```

```python
import sys, struct, math
from asmlib import Asm

N = "interleave_layers__sliding_block_cached__sliding_block_cached__decode"
LST = 0x4000
QM, OM, XM, XE, SM, ML = 0x0, 0x1000, 0x3000, 0x3800, 0x3900, 0x3c00
SMB = 0x140
XP, XPL = 0x100000, 0xc000
QM0 = XP - 0x10000
QM2 = XP - 0x8000
TAB = XP + 40 * 1024
XR, XRL = 0x200000, 0x2000
STAMP_OFF = 128 << 20
NST = 64
DPPALL = "row_mask:0xf bank_mask:0xf"
WO, WOX, RED = 36864, 102400, 110592
MISC = 131072
PB, MB, LOCW, VF = MISC, MISC + 1024, MISC + 1536, MISC + 1552
LDS = 133120


def f2u(x):
    return struct.unpack("<I", struct.pack("<f", x))[0]


DEF = dict(nt="nt", stamps=False, spin=0x20000, force_sc1=False, sleep_s=2, sleep_f=8, sleep_x=0, sleep_q=0, sleep_m=0, sleep_o=0,
           dg=1, stag_g=0, pre_g=9, kb1=4, woa1=10, wob1=0, wob2=12, hold=True, d0=3, sl0=8, d1=3, sl1=2, sleep_t=8, rounds=64, pf=True, cgx=4, prio_v=1, prio_o=1,
           cyc=False, strict=True, dbgst=False, cpf=True, amp=None)


def gen(**kw):
    P = dict(DEF)
    P.update(kw)
    nt = P["nt"]
    A = Asm(strict_dpp=P["strict"])
    uid = [0]
    tails = []

    def lab(s):
        uid[0] += 1
        return f"L_{s}_{uid[0]}"

    A.raw(f"""; persistent fused decode kernel: 8 groups x (16 weight WGs + 16 KV WGs), generated by my own script
; @launch grid=(256,1,1) block=(512,1,1) lds={LDS}
.amdgcn_target "amdgcn-amd-amdhsa--gfx950"
.text
.globl {N}_kernel
.p2align 8
.type {N}_kernel,@function
{N}_kernel:""")
    sW, sK, sIDX, sL, sLO, sLOC, sSPIN, sXPO, sXRO = "s3", "s32", "s33", "s34", "s35", "s36", "s37", "s38", "s39"
    SA, SB, XS, PUB, WS, DBG, OUT = "s[4:7]", "s[8:11]", "s[12:15]", "s[16:19]", "s[20:23]", "s[24:27]", "s[28:31]"
    pAx, pAk, pAv, pAq, pAo, pBk, pBv, pBq, pBo, pOut, pDbg = (f"s[{r}:{r+1}]" for r in (48, 50, 52, 54, 56, 60, 62, 40, 42, 44, 46))
    smf = "v_smfmac_f32_16x16x64_bf16"
    r2 = lambda r: f"v[{r}:{r+1}]"
    r4 = lambda r: f"v[{r}:{r+3}]"
    r8 = lambda r: f"v[{r}:{r+7}]"
    HIST = 255
    T = 48

    def stamp(j):
        if P["stamps"]:
            A(f"{'s_memtime' if P['cyc'] else 's_memrealtime'} s[{64+2*j}:{65+2*j}]")

    def keep(js, layer=True):
        if not P["stamps"]:
            return
        A("s_waitcnt lgkmcnt(0)")
        if layer:
            A(f"s_mul_i32 s98, {sL}, 12")
        for j in js:
            if layer:
                A(f"s_add_u32 m0, s98, {4+j}\ns_nop 0\nv_writelane_b32 v{HIST}, s{64+2*j}, m0")
            else:
                A(f"v_writelane_b32 v{HIST}, s{64+2*j}, {j-12}")

    def dump(wave, js, start, dbgs=()):
        if not P["stamps"]:
            return
        m = 0
        for L in range(4):
            for j in js:
                m |= 1 << (4 + 12 * L + j)
        for j in start:
            m |= 1 << (j - 12)
        l = lab("nost")
        A(f"s_cmp_eq_u32 {sW}, {wave}\ns_cbranch_scc0 {l}")
        A(f"s_mul_i32 s98, s2, {NST*8}\ns_add_u32 s98, s98, {STAMP_OFF}")
        A(f"v_mbcnt_lo_u32_b32 v{T}, -1, 0\nv_mbcnt_hi_u32_b32 v{T}, -1, v{T}\nv_lshlrev_b32 v{T}, 3, v{T}")
        A(f"v_mov_b32 v{T+2}, v{HIST}\nv_mov_b32 v{T+3}, 0")
        A(f"s_mov_b32 exec_lo, {m & 0xffffffff:#x}\ns_mov_b32 exec_hi, {m >> 32:#x}")
        A(f"buffer_store_dwordx2 {r2(T+2)}, v{T}, {WS}, s98 offen")
        A("s_mov_b64 exec, -1")
        for cond, lane, slot, inv in dbgs if P["dbgst"] else ():
            l2 = lab("nodb")
            if cond:
                A(f"{cond}\ns_cbranch_scc0 {l2}")
            A(f"v_readlane_b32 s98, v{HIST}, {lane}\ns_nop 3")
            if inv:
                A("s_not_b32 s98, s98")
            A(f"v_mov_b32 v{T}, s98\nv_mov_b32 v{T+1}, {slot*4}\ns_mov_b64 exec, 1\nbuffer_atomic_umax v{T}, v{T+1}, {DBG}, 0 offen sc1\ns_mov_b64 exec, -1\ns_waitcnt vmcnt(0)")
            A.label(l2)
        if P["amp"] and P["amp"][0] == wave:
            _, cond, lane, F, C0 = P["amp"]
            l2, l3 = lab("noamp"), lab("amp")
            if cond:
                A(f"{cond}\ns_cbranch_scc0 {l2}")
            A(f"v_readlane_b32 s98, v{HIST}, {lane}\ns_nop 3\ns_sub_u32 s98, s98, s88\ns_mul_i32 s98, s98, {F}\ns_add_u32 s98, s98, {C0}\ns_min_u32 s98, s98, 30000")
            A(f"{l3}:\ns_memrealtime s[96:97]\ns_waitcnt lgkmcnt(0)\ns_sub_u32 s96, s96, s88\ns_cmp_lt_u32 s96, s98\ns_cbranch_scc1 {l3}")
            A.label(l2)
        A.label(l)

    def srd(b, nrec):
        r = int(b[2:].split(":")[0])
        A(f"s_mov_b32 s{r+2}, {nrec}\ns_mov_b32 s{r+3}, 0x20000")

    def lo(b):
        r = int(b[2:].split(":")[0])
        return f"s[{r}:{r+1}]"

    def loc_test():
        if not P["force_sc1"]:
            A(f"s_cmp_eq_u32 {sLOC}, 0")

    def store_mode(instr):
        if P["force_sc1"]:
            A(instr + " sc1")
            return
        a, b = lab("sg"), lab("se")
        A(f"s_cbranch_scc1 {a}")
        n0 = A.nops
        A(instr)
        assert A.nops == n0
        A.label(b)
        tails.append(f"{a}:\n    {instr} sc1\n    s_branch {b}")

    def poll(loads, check, depth=1, sleep=0, stag=0, top=None, pre=None, alt=None):
        n = len(loads)
        top = top or lab("poll")
        done = lab("pdone")
        if pre:
            check()
            A(f"s_cbranch_vccz {done}")
        if alt:
            A(f"s_mov_b32 s99, {P['rounds']}")
        for _ in range(depth - 1):
            for l in loads:
                A(l)
            if stag:
                A(f"s_sleep {stag}")
        A.label(top)
        for l in loads:
            A(l)
        A(f"s_sub_u32 {sSPIN}, {sSPIN}, 1\ns_cmp_lt_i32 {sSPIN}, 0\ns_cbranch_scc1 {done}")
        if alt:
            A("s_sub_u32 s99, s99, 1")
            for a, b in alt:
                A(f"s_cselect_b32 {a}, {b}, {a}")
        if sleep:
            A(f"s_sleep {sleep}")
        A(f"s_waitcnt vmcnt({n*(depth-1)})")
        check()
        A(f"s_cbranch_vccnz {top}")
        A.label(done)

    def chk(regs):
        def f():
            rs = [f"v{r}" for r in regs]
            while len(rs) > 1:
                if len(rs) >= 3:
                    A(f"v_max3_u32 v{T}, {rs[0]}, {rs[1]}, {rs[2]}")
                    rs = rs[3:] + [f"v{T}"]
                else:
                    A(f"v_max_u32 v{T}, {rs[0]}, {rs[1]}")
                    rs = [f"v{T}"]
            A(f"v_cmp_eq_u32 vcc, -1, {rs[0]}")
        return f

    def retry(target):
        a, b = lab("rt"), lab("rc")
        A(f"s_cbranch_vccnz {a}")
        A.label(b)
        tails.append(f"{a}:\n    s_sub_u32 {sSPIN}, {sSPIN}, 1\n    s_cmp_lt_i32 {sSPIN}, 0\n    s_cbranch_scc1 {b}\n    s_nop 15\n    s_branch {target}")

    def xcc(r):
        A(f"s_getreg_b32 {r}, hwreg(HW_REG_XCC_ID, 0, 4)")

    def tab_store():
        xcc("s96")
        A(f"s_lshr_b32 s97, {sIDX}, 4\ns_lshl_b32 s97, s97, 10\ns_and_b32 s98, {sIDX}, 15\ns_lshl_b32 s98, s98, 2\ns_add_u32 s97, s97, s98")
        A(f"s_lshl_b32 s98, {sK}, 7\ns_add_u32 s97, s97, s98\ns_add_u32 s97, s97, {TAB}")
        A(f"v_mov_b32 v{T}, s96\nv_mov_b32 v{T+1}, 0\ns_mov_b64 exec, 1")
        A(f"buffer_store_dword v{T}, v{T+1}, {WS}, s97 offen\nbuffer_store_dword v{T}, v{T+1}, {WS}, s97 offen offset:2048 sc1")
        A("s_mov_b64 exec, -1")

    def go_poll(first):
        out = lab("flagd")
        for i in range(2):
            A(f"s_load_dwordx4 s[44:47], s[24:25], {64*(first+i)}\ns_waitcnt lgkmcnt(0)")
            A(f"s_and_b64 s[44:45], s[44:45], s[46:47]\ns_and_b32 s44, s44, s45\ns_cmp_eq_u32 s44, -1\ns_cbranch_scc1 {out}")
            A(f"s_sleep {P['sleep_f']}")
        poll([f"buffer_load_ubyte v{T+10}, v3, {DBG}, 0 offen offset:{64*first} sc1"], lambda: A(f"v_cmp_eq_u32 vcc, 0, v{T+10}"), 1, P["sleep_f"])
        A.label(out)

    def set_loc(r):
        xcc("s96")
        A(f"v_cmp_ne_u32 vcc, s96, v{r}\ns_nop 1\ns_cmp_eq_u64 vcc, 0\ns_cselect_b32 {sLOC}, 1, 0")

    def tables():
        A(f"v_and_b32 v{T+8}, 1, v4\nv_lshlrev_b32 v{T+8}, 10, v{T+8}\nv_lshl_add_u32 v{T+8}, v3, 2, v{T+8}\ns_lshl_b32 s96, {sK}, 7\ns_add_u32 s96, s96, {TAB}\ns_add_u32 s97, s96, 2048")
        poll([f"buffer_load_dword v{T+9}, v{T+8}, {WS}, s96 offen sc1"], chk([T + 9]), 1, P["sleep_t"], alt=[("s96", "s97")])
        set_loc(T + 9)

    def when(cond, fn):
        l = lab("skip")
        A(f"{cond}\ns_cbranch_scc0 {l}")
        st = A.snap()
        fn()
        A.settle()
        A.label(l)
        A.restore(st)

    def zero(a, n):
        for r in range(a, a + n, 2):
            A(f"v_mov_b64 {r2(r)}, 0")

    def swap(a, b, n):
        for r in range(n):
            A(f"v_swap_b32 v{a+r}, v{b+r}")

    def copy(dst, src, n):
        for r in range(0, n, 2):
            A(f"v_mov_b64 {r2(dst+r)}, {r2(src+r)}")

    def next_layer(loop):
        A(f"s_add_u32 {sL}, {sL}, 1\ns_add_u32 {sLO}, {sLO}, {LST}")
        A.settle()
        A(f"s_branch {loop}")

    A(f"s_lshr_b32 {sIDX}, s2, 3\ns_cmp_ge_u32 {sIDX}, 32\ns_cbranch_scc1 L_end")
    A("s_load_dwordx2 s[20:21], s[0:1], 96\ns_load_dwordx8 s[40:47], s[0:1], 64\ns_load_dwordx16 s[48:63], s[0:1], 0")
    stamp(12)
    A(f"v_lshrrev_b32 v2, 6, v0\ns_getpc_b64 s[96:97]\nL_pc:\ns_and_b32 {sK}, s2, 7")
    A(f"v_readfirstlane_b32 {sW}, v2")
    if P["cpf"]:
        A(f"s_and_b32 s98, {sIDX}, 15\ns_lshl_b32 s98, s98, 11\ns_min_u32 s98, s98, L_text_end-L_pc-2048\ns_cmp_lt_u32 {sW}, 6\ns_cbranch_scc1 L_nopf")
        A(f"s_sub_u32 s98, s98, 6144\nv_lshl_add_u32 v5, v0, 4, s98\nglobal_load_dwordx4 v[244:247], v5, s[96:97]")
        A.label("L_nopf")
    A(f"s_and_b32 s98, s2, 0xc6\ns_cmp_eq_u32 s98, 64\ns_cbranch_scc1 L_clr")
    A.label("L_role")
    A(f"s_cmp_lt_u32 {sIDX}, 16\ns_cbranch_scc0 L_kv\ns_cmp_lt_u32 {sW}, 4\ns_cbranch_scc1 L_q\ns_branch L_o")
    A.label("L_clr")
    A(f"s_lshl1_add_u32 s98, {sIDX}, {sK}\ns_lshl_b32 s99, s98, 13\ns_add_u32 s99, s99, {QM0 - 16*8192}")
    A("v_lshl_add_u32 v5, v0, 4, s99\nv_mov_b64 v[6:7], -1\nv_mov_b64 v[8:9], -1\nv_lshl_add_u32 v10, v0, 6, s98\nv_cmp_gt_u32 vcc, 4, v0\ns_waitcnt lgkmcnt(0)")
    A("global_store_dwordx4 v5, v[6:9], s[20:21] sc1")
    A("s_waitcnt vmcnt(0)\ns_barrier\ns_cbranch_vccz L_role\ns_mov_b64 exec, 15")
    A(f"global_store_byte v10, v6, {pDbg} offset:-16 sc1")
    A("s_mov_b64 exec, -1\ns_branch L_role")

    def common():
        A("v_and_b32 v1, 63, v0")
        A("v_and_b32 v3, 15, v1\nv_lshrrev_b32 v4, 4, v1")
        srd(WS, 268435456)
        srd(DBG, 256)
        A(f"s_mov_b32 s7, 0x20000\ns_mov_b32 s11, 0x20000\ns_mov_b32 {sSPIN}, {P['spin']}\ns_lshl_b32 {sLO}, {sK}, 16\ns_mov_b32 {sL}, 0\ns_mov_b32 {sLOC}, 0")

    sG, sB, sS, sGO, sLB, sF, sWQ, sQO = "s12", "s13", "s14", "s15", "s16", "s17", "s18", "s19"
    VA = 8
    ACT, SAV = 64, 128
    A.label("L_kv")
    common()
    A("s_mov_b32 s6, 33554432\ns_mov_b32 s10, 33554432")
    A(f"s_bfe_u32 {sG}, {sIDX}, 0x10003\ns_bfe_u32 {sB}, {sIDX}, 0x10002\ns_and_b32 {sS}, {sIDX}, 3\ns_and_b32 {sWQ}, {sW}, 3")
    A(f"s_lshl_b32 s96, {sK}, 1\ns_add_u32 s96, s96, {sG}\ns_lshl_b32 s96, s96, 20\ns_lshl_b32 s97, {sB}, 24\ns_add_u32 s96, s96, s97")
    A(f"s_lshl_b32 s97, {sS}, 16\ns_add_u32 s96, s96, s97\ns_lshl_b32 s97, {sWQ}, 14\ns_add_u32 s96, s96, s97")
    A(f"s_add_u32 {sGO}, s96, {3072*256}\ns_lshl_b32 {sLB}, {sW}, 14")
    A(f"s_cmp_lt_u32 {sW}, 4\ns_cselect_b32 s96, 3, 2")
    A(f"v_and_b32 v5, s96, v4\nv_xor_b32 v5, v5, v3\nv_lshlrev_b32 v5, 4, v5\nv_lshl_add_u32 v{VA}, v4, 8, v5")
    for x in (1, 2, 3):
        A(f"v_xor_b32 v{VA+x}, {x<<6}, v{VA}")
    A("s_waitcnt lgkmcnt(0)")
    A(f"s_cselect_b64 {lo(SA)}, {pAk}, {pAv}\ns_cselect_b64 {lo(SB)}, {pBk}, {pBv}\ns_mov_b64 {lo(DBG)}, {pDbg}")
    A("s_cbranch_scc0 L_v")

    def kv_dma(buf, isv, i0, i1):
        for i in range(i0, i1):
            if i % 4 == 0 or i == i0:
                A(f"s_add_u32 m0, {sLB}, {(i>>2)*4096}\ns_add_u32 s96, {sGO}, {(i>>2)*4096}")
            x = ((i & 1) | ((i >> 3) << 1)) if isv else (i & 3)
            A(f"buffer_load_dwordx4 v{VA+x}, {buf}, s96 offen offset:{(i&3)*1024} {nt} lds")

    XI = 40
    srd(OUT, 2304)
    A(f"s_mov_b64 {lo(OUT)}, {pAx}\ns_mul_i32 s97, {sB}, 1152\nv_lshlrev_b32 v5, 4, v1\nv_lshlrev_b32 v6, 2, v1\nv_mov_b32 v{XI+4}, 0")
    A(f"buffer_load_dwordx4 {r4(XI)}, v5, {OUT}, s97 offen\ns_mov_b32 exec_hi, 0")
    A(f"buffer_load_dword v{XI+4}, v6, {OUT}, s97 offen offset:1024\ns_mov_b32 exec_hi, -1")
    kv_dma(SA, False, 0, 16)
    A("s_barrier")
    stamp(13)
    RA, aQ, aS, aP, aM, aML, IX = 12, 16, 17, 18, 19, 20, 21
    Q, Q1, ST, C = 24, 28, 22, 32
    A(f"v_xor_b32 v5, v4, v3\nv_lshlrev_b32 v5, 4, v5\nv_lshl_add_u32 v5, v3, 8, v5\nv_add_u32 v{RA}, {sLB}, v5")
    for x in (1, 2, 3):
        A(f"v_xor_b32 v{RA+x}, {x<<6}, v{RA}")
    A(f"s_lshl_b32 s96, {sG}, 11\ns_lshl_b32 s97, {sB}, 10\ns_add_u32 s96, s96, s97\nv_lshlrev_b32 v{aQ}, 4, v1\nv_add_u32 v{aQ}, s96, v{aQ}")
    A(f"s_mul_i32 s96, {sB}, {SMB}\ns_add_u32 s96, s96, {SM}\nv_lshlrev_b32 v{aS}, 3, v1\nv_add_u32 v{aS}, s96, v{aS}")
    A("v_and_b32 v5, 2, v4\nv_lshrrev_b32 v6, 3, v3\nv_add_u32 v5, v5, v6\nv_lshlrev_b32 v5, 8, v5")
    A("v_and_b32 v6, 1, v4\nv_lshl_add_u32 v5, v6, 5, v5\nv_and_b32 v7, 7, v3\nv_lshl_add_u32 v5, v7, 2, v5")
    A(f"s_lshl_b32 s96, {sW}, 6\ns_add_u32 s96, s96, {PB}\nv_add_u32 v{aP}, s96, v5")
    A(f"s_lshl_b32 s96, {sW}, 2\ns_add_u32 s96, s96, {MB}\nv_add_u32 v5, s96, v1\nv_lshlrev_b32 v7, 2, v1\nv_add_u32 v7, {MB+64}, v7")
    A(f"v_and_b32 v{aM}, 47, v1\nv_cmp_eq_u32 vcc, 0, v{aM}\nv_cndmask_b32 v{aM}, v7, v5, vcc")
    A(f"s_lshl_b32 s96, {sG}, 9\ns_lshl_b32 s97, {sB}, 7\ns_add_u32 s96, s96, s97\ns_lshl_b32 s97, {sS}, 5\ns_add_u32 s96, s96, s97")
    A(f"s_lshl_b32 s97, {sW}, 3\ns_add_u32 s96, s96, s97\ns_add_u32 s96, s96, {ML}\nv_lshlrev_b32 v{aML}, 8, v6\nv_add_u32 v{aML}, s96, v{aML}")
    A(f"v_and_b32 v5, 1, v1\nv_mul_u32_u24 v{IX}, 0xaaaa, v5\nv_add_u32 v{IX}, 0x4444, v{IX}")
    A(f"v_mov_b64 {r2(ST)}, 0\ns_waitcnt vmcnt(16)")
    for r in range(5):
        A(f"v_dot2c_f32_bf16 v{ST}, 0x3f803f80, v{XI+r}\nv_dot2c_f32_bf16 v{ST+1}, v{XI+r}, v{XI+r}")
    A.settle()
    A("s_branch L_k_f")

    def k_read(mid=None):
        A("s_waitcnt vmcnt(0)")
        if mid:
            mid()
        for Tt in range(4):
            for x in range(4):
                A(f"ds_read_b128 {r4(ACT+16*Tt+8*(x>>1)+4*(x&1))}, v{RA+x} offset:{Tt*4096}")
        A("s_waitcnt lgkmcnt(0)")
    ql = f"buffer_load_dwordx4 {r4(Q)}, v{aQ}, {WS}, {sQO} offen sc1"
    sl = f"s_mov_b32 exec_hi, 0xff\nbuffer_load_dwordx2 {r2(ST)}, v{aS}, {WS}, {sLO} offen sc1\ns_mov_b32 exec_hi, -1"
    A.label("L_k_l1")
    k_read()
    stamp(0)
    poll([sl, ql], chk([ST, ST + 1, Q + 3]), P["d1"], P["sl1"], P["sl1"])
    A("s_branch L_k_f")
    A.label("L_k_loop")
    A(f"s_mov_b32 {sQO}, {sLO}\ns_waitcnt vmcnt(0)\nv_mov_b32 v{Q+3}, -1")
    zero(C, 16)
    A(f"s_cmp_eq_u32 {sL}, 1\ns_cbranch_scc1 L_k_l1")
    stamp(0)
    poll([sl], chk([ST, ST + 1]), 1, P["sleep_s"])
    A.label("L_k_f")
    stamp(1)
    SX, SQ = T + 2, T + 3
    A(f"v_mov_b64 {r2(SX)}, {r2(ST)}")
    A(f"v_permlane32_swap_b32 v{SX}, v{SQ}")
    A(f"v_add_f32 v{T+4}, v{SX}, v{SQ}\nv_add_f32 v{SX}, v{SX}, v{SQ}")
    A(f"v_permlane16_swap_b32 v{SX}, v{T+4}")
    A(f"v_add_f32 v{SX}, v{SX}, v{T+4}")
    for d in ("quad_perm:[1,0,3,2]", "quad_perm:[2,3,0,1]", "row_ror:4", "row_ror:8"):
        A(f"v_add_f32_dpp v{SX}, v{SX}, v{SX} {d} {DPPALL}")
    A(f"v_mul_f32 v{SX}, {f2u(1/576.0):#x}, v{SX}")
    A(f"v_readlane_b32 s96, v{SX}, 32")
    A(f"v_fma_f32 v{SQ}, -v{SX}, v{SX}, s96\nv_max_f32 v{SQ}, 0, v{SQ}")
    A(f"v_add_f32 v{SQ}, {f2u(1e-5):#x}, v{SQ}\nv_rsq_f32 v{SQ}, v{SQ}")
    A(f"v_mul_f32 v{SQ}, {f2u(128**-0.5*math.log2(math.e)):#x}, v{SQ}")
    A(f"v_readfirstlane_b32 {sF}, v{SQ}")
    A(f"s_cmp_eq_u32 {sL}, 0\ns_cbranch_scc0 L_k_q")
    go_poll(2)
    stamp(15)
    A(f"v_mov_b64 {r2(ST)}, 0\nv_lshlrev_b32 v{T+8}, 2, v3")
    zero(C, 16)
    k_read(lambda: when(f"s_cmp_eq_u32 {sW}, 0", tab_store))
    A(f"s_lshl_b32 s97, {sK}, 7\ns_add_u32 s97, s97, {TAB}\ns_add_u32 s98, s97, 2048\ns_lshl_b32 s96, {sK}, 12\ns_add_u32 {sQO}, s96, {QM0}\ns_add_u32 s96, s96, {QM2}")
    stamp(14)
    stamp(0)
    poll([f"buffer_load_dword v{T+12}, v{T+8}, {WS}, s97 offen sc1", ql], chk([T + 12, Q + 3]), P["d0"], P["sl0"], P["sl0"], alt=[("s97", "s98"), (sQO, "s96")])
    set_loc(T + 12)
    A(f"v_mov_b32 v{T}, {LOCW}\nv_mov_b32 v{T+1}, {sLOC}\nds_write_b32 v{T}, v{T+1}")
    A("s_branch L_k_q")
    A.label("L_k_again")
    zero(C, 16)
    A(f"v_mov_b32 v{Q+3}, -1")
    A.label("L_k_q")
    poll([ql], chk([Q + 3]), 1, P["sleep_q"], pre=True)
    stamp(2)
    KB = lambda Tt, ks: r8(ACT + 16 * Tt + 8 * ks)
    Cc = lambda Tt: C + 4 * Tt
    U0, U1, X0, X1, M0_, M1, M2, XF0, XF1 = T, T + 1, T + 2, T + 3, T + 4, T + 5, T + 6, T + 7, T + 8

    def fold(Ta, X):
        A(f"v_add_f32 v{U0}, v{Cc(Ta)}, v{Cc(Ta)+1}\nv_add_f32 v{U1}, v{Cc(Ta)+2}, v{Cc(Ta)+3}")
        yield
        A(f"v_add_f32_dpp v{U0}, v{Cc(Ta+1)}, v{Cc(Ta+1)+1} quad_perm:[0,1,2,3] row_mask:0xc bank_mask:0xf")
        A(f"v_add_f32_dpp v{U1}, v{Cc(Ta+1)+2}, v{Cc(Ta+1)+3} quad_perm:[0,1,2,3] row_mask:0xc bank_mask:0xf")
        yield
        A(f"v_permlane16_swap_b32 v{U0}, v{U1}")
        A(f"v_add_f32 v{X}, v{U0}, v{U1}")
        yield
    A(f"{smf} {r4(Cc(0))}, {r4(Q)}, {KB(0,0)}, v{IX}")
    A(f"v_mov_b32_dpp v{Q1}, v{Q} row_ror:8 {DPPALL}\nv_mov_b32_dpp v{Q1+1}, v{Q+1} row_ror:8 {DPPALL}")
    A(f"{smf} {r4(Cc(1))}, {r4(Q)}, {KB(1,1)}, v{IX}")
    A(f"v_mov_b32_dpp v{Q1+2}, v{Q+2} row_ror:8 {DPPALL}\nv_mov_b32_dpp v{Q1+3}, v{Q+3} row_ror:8 {DPPALL}")
    A(f"{smf} {r4(Cc(2))}, {r4(Q)}, {KB(2,0)}, v{IX}")
    A(f"{smf} {r4(Cc(0))}, {r4(Q1)}, {KB(0,1)}, v{IX}")
    A(f"{smf} {r4(Cc(1))}, {r4(Q1)}, {KB(1,0)}, v{IX}")
    A(f"{smf} {r4(Cc(3))}, {r4(Q)}, {KB(3,1)}, v{IX}")
    A(f"{smf} {r4(Cc(2))}, {r4(Q1)}, {KB(2,1)}, v{IX}")
    A(f"{smf} {r4(Cc(3))}, {r4(Q1)}, {KB(3,0)}, v{IX}")
    A.mark_done(list(range(Cc(0), Cc(2))), 3)
    for _ in fold(0, X0):
        pass
    for _ in fold(2, X1):
        pass
    A(f"v_max_f32 v{M0_}, v{X0}, v{X1}")
    A(f"v_cmp_u_f32 vcc, v{X0}, v{X1}\nv_mul_f32 v{XF0}, {sF}, v{X0}")
    A(f"v_max_f32_dpp v{M0_}, v{M0_}, v{M0_} quad_perm:[1,0,3,2] {DPPALL}")
    A(f"v_mul_f32 v{XF1}, {sF}, v{X1}")
    retry("L_k_again")
    A(f"v_max_f32_dpp v{M0_}, v{M0_}, v{M0_} quad_perm:[2,3,0,1] {DPPALL}")
    A(f"v_max_f32_dpp v{M0_}, v{M0_}, v{M0_} row_ror:4 {DPPALL}")
    A(f"v_max_f32_dpp v{M1}, v{M0_}, v{M0_} row_ror:8 {DPPALL}\nv_max_f32_dpp v{M0_}, v{M0_}, v{M0_} row_ror:8 {DPPALL}")
    A(f"v_permlane32_swap_b32 v{M0_}, v{M1}")
    A(f"v_max_f32 v{M0_}, v{M0_}, v{M1}")
    A(f"v_fma_f32 v{X0}, -v{M0_}, {sF}, v{XF0}\nv_fma_f32 v{X1}, -v{M0_}, {sF}, v{XF1}")
    A(f"v_exp_f32 v{X0}, v{X0}\nv_exp_f32 v{X1}, v{X1}")
    MF, LSUM = T + 10, T + 11
    A(f"v_mul_f32 v{MF}, {sF}, v{M0_}")
    A(f"v_cvt_pk_bf16_f32 v{U0}, v{X0}, v{X1}")
    A(f"ds_write_b32 v{aP}, v{U0}\nds_write_b32 v{aM}, v{MF}")
    A(f"v_add_f32 v{LSUM}, v{X0}, v{X1}")
    if P["kb1"]:
        when(f"s_cmp_eq_u32 {sL}, 0", lambda: kv_dma(SB, False, 0, P["kb1"]))
    stamp(3)
    A("s_waitcnt lgkmcnt(0)\ns_barrier")
    for d in ("quad_perm:[1,0,3,2]", "quad_perm:[2,3,0,1]", "row_ror:4"):
        A(f"v_add_f32_dpp v{LSUM}, v{LSUM}, v{LSUM} {d} {DPPALL}")
    A(f"v_add_f32_dpp v{M1}, v{LSUM}, v{LSUM} row_ror:8 {DPPALL}\nv_add_f32_dpp v{LSUM}, v{LSUM}, v{LSUM} row_ror:8 {DPPALL}")
    A(f"v_min_u32 v{MF}, -2, v{MF}")
    loc_test()
    A(f"v_permlane32_swap_b32 v{LSUM}, v{M1}")
    A(f"v_add_f32 v{LSUM}, v{LSUM}, v{M1}\nv_min_u32 v{LSUM}, -2, v{LSUM}\ns_mov_b64 exec, 0x10001")
    store_mode(f"buffer_store_dwordx2 {r2(MF)}, v{aML}, {WS}, {sLO} offen")
    A("s_mov_b64 exec, -1")
    stamp(4)
    keep([0, 1, 2, 3, 4])
    A(f"s_cmp_eq_u32 {sL}, 3\ns_cbranch_scc1 L_k_end")
    A("s_barrier")
    A(f"s_cmp_eq_u32 {sL}, 0\ns_cbranch_scc0 L_k_swap")
    kv_dma(SB, False, P["kb1"], 16)
    copy(SAV, ACT, 64)
    A("s_branch L_k_next")
    A.label("L_k_swap")
    swap(SAV, ACT, 64)
    A.label("L_k_next")
    next_layer("L_k_loop")
    A.label("L_k_end")
    keep([12, 13, 14, 15], False)
    dump(0, [0, 1, 2, 3, 4], [12, 13, 14, 15], [(None, 0, 4, True), (None, 0, 5, False)])
    A("s_endpgm")

    A.label("L_v")
    A(f"v_mov_b32 v{T}, {VF}\nv_mov_b64 {r2(T+2)}, 0\nv_mov_b64 {r2(T+4)}, 0\nds_write_b128 v{T}, {r4(T+2)}")
    RV, aPr, aMo, aMa, aO, aVF = 12, 14, 15, 16, 17, 18
    PA, MA, MO, D = 24, 28, 22, 192
    A("v_bfe_u32 v5, v1, 2, 1\nv_bfe_u32 v6, v1, 3, 1\nv_and_b32 v7, 1, v4")
    A(f"v_lshlrev_b32 v{T}, 5, v5\nv_and_b32 v{T+1}, 2, v4\nv_lshl_add_u32 v{T}, v{T+1}, 2, v{T}\nv_lshl_add_u32 v{T}, v6, 2, v{T}\nv_lshl_add_u32 v{T}, v7, 1, v{T}")
    A(f"v_lshl_add_u32 v{T+1}, v6, 1, v7\nv_lshl_add_u32 v{T+1}, v5, 2, v{T+1}\ns_lshl_b32 s96, {sWQ}, 1\nv_xor_b32 v{T+1}, s96, v{T+1}")
    A(f"v_lshlrev_b32 v{T}, 8, v{T}\nv_lshl_add_u32 v{T}, v{T+1}, 5, v{T}\nv_and_b32 v{T+1}, 3, v1\nv_lshl_add_u32 v{T}, v{T+1}, 3, v{T}")
    A(f"v_add_u32 v{RV}, 0x10000, v{T}\nv_xor_b32 v{RV+1}, 32, v{RV}")
    A(f"v_lshlrev_b32 v{aPr}, 4, v1\nv_add_u32 v{aPr}, {PB}, v{aPr}\nv_lshlrev_b32 v{aMo}, 2, v4\nv_add_u32 v{aMo}, {MB}, v{aMo}\nv_mov_b32 v{aMa}, {MB}")
    A(f"s_lshl_b32 s96, {sG}, 12\ns_lshl_b32 s97, {sWQ}, 9\ns_add_u32 s96, s96, s97\ns_and_b32 s97, {sIDX}, 7\ns_lshl_b32 s97, s97, 4\ns_add_u32 s96, s96, s97\ns_add_u32 s96, s96, {OM}")
    A(f"v_lshlrev_b32 v{aO}, 11, v7\nv_lshrrev_b32 v{T}, 1, v4\nv_lshl_add_u32 v{aO}, v{T}, 8, v{aO}\nv_lshl_add_u32 v{aO}, v6, 7, v{aO}")
    A(f"v_and_b32 v{T}, 7, v1\nv_lshl_add_u32 v{aO}, v{T}, 1, v{aO}\nv_add_u32 v{aO}, s96, v{aO}")
    A(f"s_lshl_b32 s96, {sWQ}, 2\ns_add_u32 s96, s96, {VF}\nv_mov_b32 v{aVF}, s96\nv_mov_b32 v{aVF+1}, {VF}")
    A(f"v_and_b32 v5, 1, v1\nv_mul_u32_u24 v{IX}, 0xaaaa, v5\nv_add_u32 v{IX}, 0x4444, v{IX}")
    A("s_waitcnt lgkmcnt(0)\ns_barrier")
    kv_dma(SA, True, 0, 16)
    A.settle()
    A.label("L_v_loop")

    def v_read():
        top, out = lab("vf"), lab("vfd")
        A(f"s_add_u32 s96, {sL}, 1\nv_mov_b32 v{T}, s96\ns_waitcnt vmcnt(0)\nds_write_b32 v{aVF}, v{T}")
        stamp(8)
        A.label(top)
        A(f"ds_read_b128 {r4(T+4)}, v{aVF+1}")
        A(f"s_sub_u32 {sSPIN}, {sSPIN}, 1\ns_cmp_lt_i32 {sSPIN}, 0\ns_waitcnt lgkmcnt(0)\ns_cbranch_scc1 {out}")
        A(f"v_min3_u32 v{T+1}, v{T+4}, v{T+5}, v{T+6}\nv_min_u32 v{T+1}, v{T+1}, v{T+7}\nv_cmp_gt_u32 vcc, s96, v{T+1}\ns_cbranch_vccnz {top}")
        A.label(out)
        for j in range(4):
            for u in range(2):
                for hi in range(2):
                    for pp in range(2):
                        A(f"ds_read_b64_tr_b16 {r2(ACT+16*j+8*u+4*hi+2*pp)}, v{RV+u} offset:{(64*j+16*hi+pp)*256}")
        A("s_waitcnt lgkmcnt(0)")
    when(f"s_cmp_lt_u32 {sL}, 2", v_read)
    zero(D, 32)
    if P["prio_v"]:
        A(f"s_setprio {P['prio_v']}")
    stamp(5)
    if P["stamps"]:
        A("s_waitcnt lgkmcnt(0)")
    A("s_barrier")
    A(f"ds_read_b128 {r4(PA)}, v{aPr}\nds_read_b128 {r4(MA)}, v{aMa}\nds_read_b128 {r4(MA+4)}, v{aMa} offset:16")
    A(f"ds_read2_b32 {r2(MO)}, v{aMo} offset0:0 offset1:4")
    A("s_waitcnt lgkmcnt(3)")
    Dd = lambda j, u: D + 8 * j + 4 * u
    Y = T
    AL = T + 4

    def pv(j, u):
        A(f"{smf} {r4(Dd(j,u))}, {r4(PA)}, {r8(ACT+16*j+8*u)}, v{IX}")

    def pick(j, u):
        for h in range(2):
            if j == 0:
                A(f"v_add_f32 v{Y+2*u+h}, v{Dd(j,u)+2*h}, v{Dd(j,u)+2*h+1}")
            else:
                A(f"v_add_f32_dpp v{Y+2*u+h}, v{Dd(j,u)+2*h}, v{Dd(j,u)+2*h+1} quad_perm:[0,1,2,3] row_mask:{1<<j:#x} bank_mask:0xf")
    pv(0, 0)
    A("s_waitcnt lgkmcnt(0)")
    stamp(6)
    pv(0, 1)
    A(f"v_max3_f32 v{AL}, v{MA}, v{MA+1}, v{MA+2}\nv_max3_f32 v{AL+1}, v{MA+4}, v{MA+5}, v{MA+6}\nv_max_f32 v{AL}, v{AL}, v{MA+3}")
    pv(1, 0)
    A(f"v_max_f32 v{AL+1}, v{AL+1}, v{MA+7}\nv_sub_f32 v{AL}, v{MO}, v{AL}\nv_sub_f32 v{AL+1}, v{MO+1}, v{AL+1}")
    pv(1, 1)
    A(f"v_exp_f32 v{AL}, v{AL}\nv_exp_f32 v{AL+1}, v{AL+1}")
    pv(2, 0)
    pick(0, 0)
    pv(2, 1)
    pick(0, 1)
    pv(3, 0)
    pick(1, 0)
    pv(3, 1)
    pick(1, 1)
    when(f"s_cmp_eq_u32 {sL}, 0", read_loc0 := (lambda: A(f"v_mov_b32 v{T+8}, {LOCW}\nds_read_b32 v{T+9}, v{T+8}\ns_waitcnt lgkmcnt(0)\nv_readfirstlane_b32 {sLOC}, v{T+9}")))
    pick(2, 0)
    pick(2, 1)
    loc_test()
    pick(3, 0)
    A(f"v_mul_f32 v{Y}, v{Y}, v{AL}\nv_mul_f32 v{Y+1}, v{Y+1}, v{AL+1}")
    pick(3, 1)
    A(f"v_mul_f32 v{Y+2}, v{Y+2}, v{AL}\nv_mul_f32 v{Y+3}, v{Y+3}, v{AL+1}")
    A(f"v_permlane32_swap_b32 v{Y}, v{Y+2}\nv_permlane32_swap_b32 v{Y+1}, v{Y+3}")
    A(f"v_add_f32 v{Y}, v{Y}, v{Y+2}\nv_add_f32 v{Y+1}, v{Y+1}, v{Y+3}")
    A(f"v_permlane16_swap_b32 v{Y}, v{Y+1}")
    A(f"v_add_f32 v{Y}, v{Y}, v{Y+1}")
    A(f"v_cvt_pk_bf16_f32 v{Y}, v{Y}, v{Y}\nv_min_u32 v{Y}, 0xfffefffe, v{Y}")
    store_mode(f"buffer_store_short v{Y}, v{aO}, {WS}, {sLO} offen")
    stamp(7)
    if P["prio_v"]:
        A("s_setprio 0")
    keep([5, 6, 7, 8])
    A(f"s_cmp_eq_u32 {sL}, 3\ns_cbranch_scc1 L_v_end")
    A("s_barrier")
    A(f"s_cmp_eq_u32 {sL}, 0\ns_cbranch_scc0 L_v_swap")
    kv_dma(SB, True, 0, 16)
    copy(SAV, ACT, 64)
    A("s_branch L_v_next")
    A.label("L_v_swap")
    swap(SAV, ACT, 64)
    A.label("L_v_next")
    next_layer("L_v_loop")
    A.label("L_v_end")
    dump(4, [5, 6, 7, 8], [], [(None, 12, 7, False), (None, 11, 8, False), (None, 23, 11, False)])
    A("s_endpgm")

    sC, sTY, sKH, sCG, sMODE, sG0, sHALF, sPO = "s100", "s101", "s58", "s59", "s60", "s61", "s62", "s63"

    def w_head():
        common()
        A("s_mov_b32 s6, 4718592\ns_mov_b32 s10, 4718592")
        srd(XS, 2304)
        srd(OUT, 2304)
        srd(PUB, 268435456)
        A(f"s_and_b32 {sC}, {sIDX}, 7\ns_lshr_b32 {sTY}, {sIDX}, 3")
        A("v_lshrrev_b32 v5, 3, v1\nv_and_b32 v6, 7, v1\nv_lshrrev_b32 v7, 5, v1\nv_lshlrev_b32 v7, 1, v7\nv_xor_b32 v7, v7, v6")

    aRD, aXS, aXG, aXR, aPB, aSM, aIO, XV = 8, 9, 10, 11, 12, 13, 14, 15
    G = 16

    def rg_setup(t_scalar):
        A(t_scalar)
        A(f"s_mul_i32 s96, {sC}, 5\ns_add_u32 s96, s96, s97")
        A(f"v_lshl_add_u32 v{T}, v6, 2, v4\nv_lshlrev_b32 v{T+1}, 2, v{T}")
        A(f"s_lshl_b32 s98, s97, 10\ns_add_u32 s98, s98, {RED}\nv_lshlrev_b32 v{aXG}, 4, v1\nv_add_u32 v{aRD}, s98, v{aXG}")
        A(f"s_lshl_b32 s98, s96, 10\nv_add_u32 v{aXG}, s98, v{aXG}\ns_lshl_b32 s99, {sK}, 7\ns_add_u32 s98, s98, s99\nv_add_u32 v{aXS}, s98, v{T+1}")
        A(f"s_lshl_b32 s98, s96, 7\nv_add_u32 v{aXR}, s98, v{T+1}")
        A(f"v_lshrrev_b32 v{T+2}, 2, v6\ns_lshl_b32 s98, s96, 3\ns_add_u32 s98, s98, {SM}")
        A(f"v_mul_u32_u24 v{aSM}, {SMB}, v{T+2}\nv_lshrrev_b32 v{T+3}, 5, v1\nv_lshl_add_u32 v{aSM}, v{T+3}, 2, v{aSM}\nv_add_u32 v{aSM}, s98, v{aSM}")
        A(f"s_lshl_b32 s98, {sC}, 2\ns_add_u32 s98, s98, s97\ns_lshr_b32 s99, {sC}, 1\ns_add_u32 s99, s99, 32")
        A(f"s_cmp_eq_u32 s97, 4\ns_cselect_b32 s98, s99, s98\ns_cselect_b32 {sHALF}, 0.5, 1.0\ns_cselect_b64 vcc, -1, 0\ns_and_b32 s99, {sC}, 1")
        A(f"v_bfe_u32 v{T+3}, v{T}, 3, 1\nv_mov_b32 v{T+4}, s99\nv_cndmask_b32 v{T+3}, v{T+3}, v{T+4}, vcc")
        A(f"v_and_b32 v{T+4}, 7, v{T}\nv_lshl_add_u32 v{T+4}, v{T+3}, 3, v{T+4}\nv_lshlrev_b32 v{T+4}, 1, v{T+4}")
        A(f"s_lshl_b32 s99, s98, 5\nv_mul_u32_u24 v{aIO}, 1152, v{T+2}\nv_add3_u32 v{aIO}, v{aIO}, v{T+4}, s99")
        A("s_cmp_ge_u32 s98, 18\ns_cselect_b32 s99, 1, 0\ns_cselect_b32 s96, 18, 0\ns_sub_u32 s98, s98, s96")
        A(f"s_and_b32 s96, s98, 3\ns_lshl_b32 s96, s96, 8\ns_lshr_b32 s97, s98, 2\ns_lshl_b32 s97, s97, 6\ns_add_u32 s96, s96, s97\ns_lshl_b32 s97, s99, 10\ns_add_u32 s96, s96, s97\ns_add_u32 s96, s96, {XM}")
        A(f"s_and_b32 s97, s98, 1\ns_lshl_b32 s97, s97, 6\ns_lshl_b32 s99, s99, 7\ns_add_u32 s97, s97, s99\ns_add_u32 s97, s97, {XE}")
        A(f"s_cmp_lt_u32 s98, 16\ns_cselect_b32 s96, s96, s97\nv_lshl_add_u32 v{aPB}, v{T+2}, 5, v{T+4}\nv_add_u32 v{aPB}, s96, v{aPB}")
        A(f"s_mov_b32 {sXPO}, {XP}\ns_lshl_b32 {sXRO}, {sK}, 15\ns_add_u32 {sXRO}, {sXRO}, {XR}")

    def tr_base(dst):
        A(f"v_bfe_u32 v{T}, v1, 2, 1\nv_bfe_u32 v{T+1}, v1, 3, 1\nv_and_b32 v{T+2}, 1, v4\nv_lshrrev_b32 v{T+3}, 1, v4")
        A(f"v_lshl_add_u32 v{dst}, v{T+3}, 4, v{T}\nv_lshl_add_u32 v{dst}, v{T+2}, 2, v{dst}\nv_lshl_add_u32 v{dst}, v{T+1}, 3, v{dst}")
        A(f"v_lshl_add_u32 v{dst+1}, v{T+1}, 1, v{T+2}")

    def w_srds():
        A(f"s_mov_b64 {lo(DBG)}, {pDbg}\ns_mov_b64 {lo(XS)}, {pAx}\ns_mov_b64 {lo(OUT)}, {pOut}\ns_mov_b64 {lo(PUB)}, {lo(WS)}")

    aW, aTR, aXO, aXT, aXE, aQS, QI = 24, 25, 26, 27, 28, 29, 30
    XO, XT, XX, X0R = 32, 36, 40, 224
    DQ, EQ = 160, 176
    WQ, WSV = 64, 112
    sE = "s[56:57]"
    sQS = "s55"
    A.label("L_q")
    w_head()
    A(f"s_and_b32 s96, {sW}, 1\ns_lshl_b32 s96, s96, 2\nv_xor_b32 v{aW}, s96, v7\nv_lshlrev_b32 v{aW}, 4, v{aW}\nv_lshl_add_u32 v{aW}, v5, 13, v{aW}")
    A(f"s_and_b32 s98, {sIDX}, 1\ns_mul_i32 s96, s98, {288*8192}\ns_lshl_b32 s97, {sW}, 16\ns_add_u32 s96, s96, s97\ns_lshl_b32 s97, {sK}, 10\ns_add_u32 s96, s96, s97")
    A(f"s_lshr_b32 s97, {sIDX}, 1\ns_xor_b32 s97, s97, {P['cgx']}\ns_lshl_b32 s97, s97, 7\ns_add_u32 s99, s96, s97")
    A(f"v_bfe_u32 v{T}, v1, 1, 1\nv_mul_u32_u24 v{T}, 1152, v{T}\nv_and_b32 v{T+1}, 1, v1\nv_lshl_add_u32 v{T}, v{T+1}, 4, v{T}")
    A(f"v_bfe_u32 v{T+1}, v1, 2, 2\nv_lshl_add_u32 v{T+2}, v4, 5, v{T}\nv_lshl_add_u32 v{T+2}, v{T+1}, 7, v{T+2}")
    A(f"v_and_b32 v{T+3}, 1, v4\nv_lshl_add_u32 v{T+3}, v{T+3}, 5, v{T}\nv_xor_b32 v{T+1}, s98, v{T+1}\nv_and_b32 v{T+1}, 1, v{T+1}\nv_mul_u32_u24 v{T+4}, 576, v{T+1}\nv_add_u32 v{T+3}, v{T+3}, v{T+4}")
    A(f"s_mul_i32 s96, s98, 576\ns_sub_u32 s97, 576, s96")
    zero(X0R + 8, 4)
    A("s_waitcnt lgkmcnt(0)")
    A(f"s_mov_b64 {lo(SA)}, {pAq}\ns_mov_b64 {lo(SB)}, {pBq}")
    w_srds()
    A(f"s_mov_b32 {sKH}, s98\ns_lshr_b32 {sCG}, {sIDX}, 1\ns_xor_b32 {sCG}, {sCG}, {P['cgx']}\ns_mov_b32 {sG0}, s99\ns_mov_b32 s56, 0x000f000f\ns_mov_b32 s57, 0x00ff00ff")

    def wq_dma(buf):
        A(f"s_lshl_b32 s98, {sW}, 10")
        for t in range(9):
            A(f"s_add_u32 m0, s98, {t*4096}\ns_add_u32 s99, {sG0}, {t*32*8192}")
            A(f"buffer_load_dwordx4 v{aW}, {buf}, s99 offen {nt} lds")
    wq_dma(SA)
    A(f"buffer_load_dwordx4 {r4(X0R)}, v{T+2}, {XS}, s96 offen\nbuffer_load_dwordx4 {r4(X0R+4)}, v{T+2}, {XS}, s97 offen")
    A(f"s_mov_b64 exec, {sE}\nbuffer_load_dwordx4 {r4(X0R+8)}, v{T+3}, {XS}, 0 offen offset:512\ns_mov_b64 exec, -1")
    A("s_barrier")
    stamp(13)
    A(f"v_and_b32 v{aXE}, 3, v1\nv_lshlrev_b32 v{aXE}, 4, v{aXE}\nv_lshl_add_u32 v{aXE}, v{T+1}, 7, v{aXE}\nv_and_b32 v{T+5}, 1, v4\nv_lshl_add_u32 v{aXE}, v{T+5}, 6, v{aXE}\nv_add_u32 v{aXE}, {XE}, v{aXE}")
    A(f"s_lshl_b32 s96, {sKH}, 10\ns_add_u32 s96, s96, {XM}\nv_lshlrev_b32 v{aXO}, 4, v1\nv_add_u32 v{aXO}, s96, v{aXO}\nv_xor_b32 v{aXT}, 0x400, v{aXO}")
    A(f"s_lshr_b32 s96, {sCG}, 2\ns_lshl_b32 s96, s96, 11\ns_lshl_b32 s97, {sW}, 8\ns_add_u32 s96, s96, s97\ns_and_b32 s97, {sCG}, 1\ns_lshl_b32 s97, s97, 7\ns_add_u32 s96, s96, s97")
    A(f"s_lshl_b32 s97, {sKH}, 6\ns_add_u32 s96, s96, s97\ns_and_b32 s97, {sCG}, 2\ns_lshl_b32 s97, s97, 4\ns_add_u32 s96, s96, s97")
    A(f"v_and_b32 v{QI}, 1, v1\nv_lshlrev_b32 v{aQS}, 1, v{QI}\nv_and_b32 v{T+5}, 12, v1\nv_add_u32 v{aQS}, v{aQS}, v{T+5}\nv_bfe_u32 v{T+5}, v1, 1, 1\nv_lshl_add_u32 v{aQS}, v{T+5}, 4, v{aQS}")
    A(f"v_lshrrev_b32 v{T+5}, 5, v1\nv_lshl_add_u32 v{aQS}, v{T+5}, 10, v{aQS}\nv_add_u32 v{aQS}, s96, v{aQS}")
    A(f"v_mul_u32_u24 v{QI}, 0xaaaa, v{QI}\nv_add_u32 v{QI}, 0x4444, v{QI}")
    tr_base(T + 8)
    A(f"v_xor_b32 v{T+9}, {sW}, v{T+9}\nv_lshlrev_b32 v{aTR}, 7, v{T+8}\nv_lshl_add_u32 v{aTR}, v{T+9}, 5, v{aTR}\nv_and_b32 v{T}, 3, v1\nv_lshl_add_u32 v{aTR}, v{T}, 3, v{aTR}")
    rg_setup("s_mov_b32 s97, 4")
    A(f"buffer_load_ushort v{XV}, v{aIO}, {XS}, 0 offen")

    def q_flags():
        A("s_waitcnt vmcnt(12)")
        go_poll(0)
        stamp(15)
    when(f"s_cmp_eq_u32 {sW}, 1", q_flags)
    A("s_waitcnt vmcnt(0) lgkmcnt(0)")
    stamp(14)
    A(f"v_lshlrev_b32 v{XV}, 16, v{XV}\ns_mov_b32 {sLOC}, 1\ns_lshl_b32 {sQS}, {sK}, 12\ns_add_u32 {sQS}, {sQS}, {QM0}")
    A("s_barrier")

    def colsum(mode):
        for st in range(5):
            for hi in range(2 if st < 4 else 1):
                for pp in range(2):
                    A(f"ds_read_b64_tr_b16 {r2(WQ+8*st+4*hi+2*pp)}, v{aTR} offset:{(64*st+32*hi+2*pp)*128}")
        zero(WQ + 36, 8)
        zero(DQ, 20)
        zero(XT, 8)
        A(f"v_mov_b32 v{T}, 0x3f803f80")
        for r in range(4):
            A(f"v_mov_b32 v{XO+r}, v{T}")
        A("s_mov_b64 exec, 0x000f000f")
        for r in range(4):
            A(f"v_mov_b32 v{XX+r}, v{T}")
        A(f"s_mov_b64 exec, -1\ns_mov_b32 {sMODE}, {mode}\ns_waitcnt lgkmcnt(0)")
        A.settle()
        A("s_branch L_q_go")
        A.label(f"L_q_cs{mode}")
        A(f"s_mov_b32 {sMODE}, 0")
    colsum(1)
    copy(XO, X0R, 12)
    zero(DQ, 20)
    A.settle()
    A("s_branch L_q_go")
    A.label("L_q_loop")
    A(f"s_mov_b32 {sQS}, {sLO}")
    zero(DQ, 20)
    stamp(0)
    poll([f"buffer_load_dwordx4 {r4(XO)}, v{aXO}, {WS}, {sLO} offen sc1", f"buffer_load_dwordx4 {r4(XT)}, v{aXT}, {WS}, {sLO} offen sc1",
          f"s_mov_b64 exec, {sE}\nbuffer_load_dwordx4 {r4(XX)}, v{aXE}, {WS}, {sLO} offen sc1\ns_mov_b64 exec, -1"],
         chk([XO + 3, XT + 3, XX + 3]), 1, P["sleep_x"])
    A.label("L_q_go")
    stamp(1)
    E0, E1, Y0, Y1, Y2 = T, T + 1, T + 2, T + 3, T + 4
    A(f"{smf} {r4(EQ)}, {r4(XX)}, {r8(WQ+32)}, v{QI}")
    A(f"{smf} {r4(DQ)}, {r4(XO)}, {r8(WQ)}, v{QI}")
    A(f"{smf} {r4(EQ)}, {r4(XO)}, {r8(WQ+36)}, v{QI}")
    A(f"{smf} {r4(DQ+4)}, {r4(XO)}, {r8(WQ+8)}, v{QI}")
    A(f"{smf} {r4(EQ)}, {r4(XT)}, {r8(WQ+36)}, v{QI}")
    A(f"{smf} {r4(DQ+8)}, {r4(XO)}, {r8(WQ+16)}, v{QI}")
    A(f"{smf} {r4(DQ+12)}, {r4(XO)}, {r8(WQ+24)}, v{QI}")
    A.mark_done(list(range(DQ, DQ + 8)), 3)

    def qpick(j):
        for b_ in range(2):
            if j == 0:
                A(f"v_add_f32 v{Y0+b_}, v{DQ+2*b_}, v{DQ+2*b_+1}")
            else:
                A(f"v_add_f32_dpp v{Y0+b_}, v{DQ+4*j+2*b_}, v{DQ+4*j+2*b_+1} quad_perm:[0,1,2,3] row_mask:{1<<j:#x} bank_mask:0xf")
    qpick(0)
    qpick(1)
    A.mark_done(list(range(EQ, EQ + 4)), 2, 4)
    A(f"v_add_f32 v{E0}, v{EQ}, v{EQ+1}\nv_add_f32 v{E1}, v{EQ+2}, v{EQ+3}")
    qpick(2)
    qpick(3)
    A(f"v_add_f32 v{Y0}, v{Y0}, v{E0}\nv_add_f32 v{Y1}, v{Y1}, v{E1}")
    A(f"v_cmp_u_f32 vcc, v{E0}, v{E1}\ns_cmp_eq_u32 {sMODE}, 0")
    A(f"v_permlane32_swap_b32 v{Y0}, v{Y1}")
    A(f"v_add_f32 v{Y2}, v{Y0}, v{Y1}\nv_add_f32 v{Y0}, v{Y0}, v{Y1}")
    A("s_cbranch_scc0 L_q_cs")
    retry("L_q_again")
    A(f"v_permlane16_swap_b32 v{Y0}, v{Y2}")
    loc_test()
    A(f"v_add_f32 v{Y0}, v{Y0}, v{Y2}")
    A(f"v_cvt_pk_bf16_f32 v{Y0}, v{Y0}, v{Y0}\nv_min_u32 v{Y0}, 0xfffefffe, v{Y0}")
    store_mode(f"buffer_store_short v{Y0}, v{aQS}, {WS}, {sQS} offen")
    stamp(2)
    A("s_barrier")
    keep([0, 1, 2])
    A(f"s_cmp_eq_u32 {sL}, 0\ns_cbranch_scc0 L_q_swap")
    A(f"s_lshl_b32 s96, {sK}, 12\ns_add_u32 s96, s96, {QM2}\ns_mov_b32 exec_lo, 0xffff\ns_mov_b32 exec_hi, 0xffff")
    A(f"buffer_store_short v{Y0}, v{aQS}, {WS}, s96 offen sc1\ns_mov_b64 exec, -1")
    if P["hold"]:
        when(f"s_cmp_eq_u32 {sTY}, 1", lambda: A("s_barrier"))
    wq_dma(SB)
    copy(WSV, WQ, 44)
    tables()
    A(f"s_or_b32 s96, {sW}, {sTY}\ns_cbranch_scc0 L_rg")
    A("s_barrier")
    A.label("L_cs2")
    colsum(2)
    zero(XX, 4)
    A(f"s_or_b32 s96, {sW}, {sTY}\ns_cbranch_scc0 L_rg2\ns_branch L_w_next")
    A.label("L_q_swap")
    swap(WQ, WSV, 44)
    A(f"s_and_b32 s96, {sL}, 1\ns_cmp_eq_u32 s96, {sTY}\ns_cbranch_scc0 L_w_next")
    A(f"s_cmp_eq_u32 {sW}, 0\ns_cbranch_scc1 L_rg")
    A("s_barrier")
    A("s_branch L_w_next")
    A.label("L_q_again")
    A(f"s_cmp_eq_u32 {sL}, 0\ns_cbranch_scc0 L_q_loop")
    A(f"s_mov_b32 {sSPIN}, -1")
    zero(DQ, 20)
    A.settle()
    A("s_branch L_q_go")
    A.label("L_q_cs")
    A("s_nop 1")
    A(f"v_permlane16_swap_b32 v{Y0}, v{Y2}")
    A(f"v_add_f32 v{Y0}, v{Y0}, v{Y2}\nv_mul_f32 v{Y0}, {f2u(-1/576.0):#x}, v{Y0}\nv_cvt_pk_bf16_f32 v{Y0}, v{Y0}, v{Y0}")
    A.settle()
    for r in range(8):
        A(f"v_mov_b32 v{WQ+36+r}, v{Y0}")
    A(f"s_cmp_eq_u32 {sMODE}, 1\ns_cbranch_scc1 L_q_cs1\ns_branch L_q_cs2")

    A.label("L_o")
    w_head()
    aO0, aOX, aT0, aTX, aOM, aMLr, aRW, OI = 24, 26, 28, 27, 32, 33, 34, 35
    OA, MLr, FQ, DO, OB = 36, 44, 46, 160, 64
    sH = "s58"
    A(f"v_lshlrev_b32 v{aO0}, 4, v7\nv_mul_u32_u24 v{T}, 1152, v5\nv_xor_b32 v{aO0+1}, 64, v{aO0}\nv_add_u32 v{aO0}, v{aO0}, v{T}\nv_add_u32 v{aO0+1}, v{aO0+1}, v{T}")
    A(f"v_mul_u32_u24 v{aOX}, 1152, v1")
    A("s_waitcnt lgkmcnt(0)")
    A(f"s_cmp_eq_u32 {sTY}, 0\ns_cselect_b64 {lo(SA)}, {pAo}, {pBo}")
    w_srds()

    MK = 36

    for r in range(4):
        A(f"v_mov_b32 v{MK+r}, -1")
    A(f"v_lshlrev_b32 v{MK+4}, 4, v1\nv_lshlrev_b32 v{MK+5}, 4, v6\nv_lshl_add_u32 v{MK+5}, v5, 10, v{MK+5}")

    def clears():
        def own():
            A(f"s_lshl_b32 s96, {sIDX}, 12\ns_add_u32 s96, s96, {sLO}")
            for i in range(4):
                A(f"buffer_store_dwordx4 {r4(MK)}, v{MK+4}, {WS}, s96 offen offset:{i*1024} sc1")
        when(f"s_cmp_lg_u32 {sIDX}, 0", own)
        A(f"s_mul_i32 s96, {sC}, 5120\ns_mul_i32 s97, {sTY}, {XPL}\ns_add_u32 s96, s96, s97\ns_lshl_b32 s97, {sK}, 7\ns_add_u32 s96, s96, s97\ns_add_u32 s96, s96, {XP}\ns_add_u32 s97, s96, {2*XPL}")
        A("s_mov_b32 exec_hi, 0xff")
        A(f"buffer_store_dwordx4 {r4(MK)}, v{MK+5}, {WS}, s96 offen sc1\nbuffer_store_dwordx4 {r4(MK)}, v{MK+5}, {WS}, s97 offen sc1")
        A("s_mov_b32 exec_hi, -1")
    A(f"s_sub_u32 {sH}, {sW}, 4\ns_lshl_b32 s96, {sK}, 2\ns_add_u32 s96, s96, {sH}\ns_mul_i32 {sG0}, s96, {128*1152}")
    rg_setup(f"s_mov_b32 s97, {sH}")
    tr_base(T + 8)
    A(f"s_lshl_b32 s96, {sH}, 14\ns_add_u32 s96, s96, {WO}\nv_lshlrev_b32 v{aT0}, 7, v{T+8}\nv_lshl_add_u32 v{aT0}, v{T+9}, 5, v{aT0}\nv_and_b32 v{T}, 3, v1")
    A(f"v_lshl_add_u32 v{aT0}, v{T}, 3, v{aT0}\nv_add_u32 v{aT0}, s96, v{aT0}")
    for t in (1, 2, 3):
        A(f"v_xor_b32 v{aT0+t}, {t<<5}, v{aT0}")
    A(f"s_lshl_b32 s96, {sH}, 11\ns_add_u32 s97, s96, {WOX}\nv_and_b32 v{T}, 1, v1\nv_lshlrev_b32 v{aTX}, 3, v{T}\nv_lshl_add_u32 v{aTX}, v{T+8}, 4, v{aTX}\nv_add_u32 v{aTX}, s97, v{aTX}")
    A(f"s_add_u32 s96, s96, {OM}\nv_lshlrev_b32 v{aOM}, 4, v1\nv_add_u32 v{aOM}, s96, v{aOM}")
    A(f"s_lshl_b32 s96, {sH}, 8\ns_add_u32 s97, s96, {ML}\nv_and_b32 v{T}, 31, v1\nv_lshlrev_b32 v{aMLr}, 3, v{T}\nv_add_u32 v{aMLr}, s97, v{aMLr}")
    A(f"s_add_u32 s96, s96, {RED}\nv_lshlrev_b32 v{aRW}, 2, v1\nv_add_u32 v{aRW}, s96, v{aRW}")
    A(f"v_bfe_u32 v{OI}, v1, 3, 1\nv_mul_u32_u24 v{OI}, 0xaaaa, v{OI}\nv_add_u32 v{OI}, 0x4444, v{OI}")

    sWI, sWM, sWS = "s59", "s56", "s57"

    A("s_barrier")
    when(f"s_cmp_eq_u32 {sW}, 4", clears)
    A(f"buffer_load_ushort v{XV}, v{aIO}, {XS}, 0 offen")
    A(f"s_mov_b32 {sWI}, 0\ns_lshl_b32 {sWM}, {sH}, 14\ns_add_u32 {sWM}, {sWM}, {WO}\ns_lshl_b32 {sWS}, {sC}, 7\ns_add_u32 {sWS}, {sWS}, {sG0}")

    def wo_run(lim):
        top, out = lab("wo"), lab("wod")
        A.label(top)
        A(f"s_cmp_ge_u32 {sWI}, {lim}\ns_cbranch_scc1 {out}")
        for e in range(2):
            A(f"s_mov_b32 m0, {sWM}\ns_add_u32 {sWM}, {sWM}, 1024")
            A(f"buffer_load_dwordx4 v{aO0+e}, {SA}, {sWS} offen {nt} lds")
            A(f"s_add_u32 {sWS}, {sWS}, {8*1152}")
        A(f"s_add_u32 {sWI}, {sWI}, 2\ns_branch {top}")
        A.label(out)

    def wo_extra():
        A(f"s_lshl_b32 s98, {sH}, 11\ns_lshl_b32 s97, {sC}, 4\ns_add_u32 s97, s97, {sG0}")
        for e in range(2):
            A(f"s_add_u32 m0, s98, {WOX+e*1024}\ns_add_u32 s99, s97, {e*64*1152+1024}")
            A(f"buffer_load_dwordx4 v{aOX}, {SA}, s99 offen lds")
    npf = 2 if P["pf"] else 0
    A(f"s_lshl_b32 s96, {sK}, 5\ns_lshl_b32 s97, {sC}, 2\ns_add_u32 s96, s96, s97\ns_add_u32 s96, s96, {sH}\ns_mul_i32 s96, s96, {16*1152}\ns_lshl_b32 s98, {sH}, 11")
    for e in range(npf):
        A(f"s_add_u32 m0, s98, {WOX+e*1024}\ns_add_u32 s99, s96, {e*8*1152+1024}")
        A(f"buffer_load_dwordx4 v{aO0}, {SA}, s99 offen lds")
    A(f"s_cmp_eq_u32 {sTY}, 0\ns_cselect_b32 s96, {P['woa1']}, {P['wob1']}")
    wo_run("s96")
    A("s_barrier")
    la, lb = lab("wa"), lab("wb")
    A(f"s_cmp_eq_u32 {sTY}, 0\ns_cbranch_scc1 {la}\ns_waitcnt vmcnt({P['wob1']+npf})\ns_branch {lb}\n{la}:\ns_waitcnt vmcnt({P['woa1']+npf})\n{lb}:")
    A(f"v_lshlrev_b32 v{XV}, 16, v{XV}\ns_mov_b32 {sMODE}, 0")
    when(f"s_cmp_eq_u32 {sW}, 4", tab_store)
    A.label("L_o_loop")
    A("s_barrier")

    def o_zero():
        def hold():
            tables()
            if P["hold"] == 2:
                poll([f"buffer_load_dwordx2 {r2(MLr)}, v{aMLr}, {WS}, {sLO} offen sc1"], lambda: A(f"v_cmp_ne_u32 vcc, -1, v{MLr}\ns_nop 1\ns_cmp_eq_u64 vcc, 0\ns_cselect_b64 vcc, -1, 0"), 1, P["sleep_t"])
            if P["hold"] == 3:
                poll([f"buffer_load_dwordx2 {r2(MLr)}, v{aMLr}, {WS}, {sLO} offen sc1"], chk([MLr]), 1, P["sleep_t"])
            A("s_barrier")
        if P["hold"]:
            when(f"s_cmp_eq_u32 {sTY}, 1", hold)
        A(f"s_setprio {P['prio_o']}")
        wo_extra()

        def b_part():
            wo_run(P["wob2"])
            A("s_setprio 0")
            A("s_barrier")
        when(f"s_cmp_eq_u32 {sTY}, 1", b_part)
    when(f"s_cmp_eq_u32 {sL}, 0", o_zero)
    A(f"s_and_b32 s96, {sL}, 1\ns_cmp_eq_u32 s96, {sTY}\ns_cbranch_scc0 L_w_next")

    def o_first():
        wo_run(16)
        A("s_setprio 0")
        tables()
        for t in range(5):
            for ks in range(2):
                for hi in range(2):
                    for pp in range(2):
                        row = 64 * ks + 32 * hi + 2 * pp
                        A(f"ds_read_b64_tr_b16 {r2(OB+16*t+8*ks+4*hi+2*pp)}, v{aT0+t if t < 4 else aTX} offset:{row*(128 if t < 4 else 16)}")
        A("s_waitcnt lgkmcnt(0)")
    when(f"s_cmp_lt_u32 {sL}, 2", o_first)
    stamp(3)
    poll([f"buffer_load_dwordx2 {r2(MLr)}, v{aMLr}, {WS}, {sLO} offen sc1"], chk([MLr, MLr + 1]), 1, P["sleep_m"])
    stamp(4)
    MQ, MM, WL = T + 1, T + 2, T + 3
    A(f"v_max_f32_dpp v{MQ}, v{MLr}, v{MLr} quad_perm:[1,0,3,2] {DPPALL}")
    A(f"v_max_f32_dpp v{MQ}, v{MQ}, v{MQ} quad_perm:[2,3,0,1] {DPPALL}")
    A(f"v_max_f32_dpp v{MM}, v{MQ}, v{MQ} row_ror:4 {DPPALL}")
    A(f"v_max_f32_dpp v{MM}, v{MM}, v{MM} row_ror:8 {DPPALL}")
    A(f"v_sub_f32 v{WL}, v{MLr}, v{MM}\nv_sub_f32 v{MQ}, v{MQ}, v{MM}\nv_exp_f32 v{WL}, v{WL}\nv_exp_f32 v{MQ}, v{MQ}")
    A(f"v_mul_f32 v{WL}, v{WL}, v{MLr+1}")
    for d in ("quad_perm:[1,0,3,2]", "quad_perm:[2,3,0,1]", "row_ror:4", "row_ror:8"):
        A(f"v_add_f32_dpp v{WL}, v{WL}, v{WL} {d} {DPPALL}")
    A(f"v_rcp_f32 v{WL}, v{WL}\nv_mul_f32 v{FQ}, v{MQ}, v{WL}")
    A.label("L_o_again")
    zero(DO, 20)
    poll([f"buffer_load_dwordx4 {r4(OA)}, v{aOM}, {WS}, {sLO} offen sc1", f"buffer_load_dwordx4 {r4(OA+4)}, v{aOM}, {WS}, {sLO} offen offset:1024 sc1"],
         chk([OA + 3, OA + 7]), 1, P["sleep_o"])
    stamp(5)

    def om(t, ks):
        A(f"{smf} {r4(DO+4*t)}, {r4(OA+4*ks)}, {r8(OB+16*t+8*ks)}, v{OI}")

    def ow(t):
        a, b = T + 2 * (t & 1), T + 2 * (t & 1) + 1
        A(f"v_mul_f32_dpp v{a}, v{FQ}, v{DO+4*t} row_newbcast:0 {DPPALL}\nv_mul_f32_dpp v{b}, v{FQ}, v{DO+4*t+1} row_newbcast:4 {DPPALL}")
        A(f"v_fmac_f32_dpp v{a}, v{FQ}, v{DO+4*t+2} row_newbcast:8 {DPPALL}\nv_fmac_f32_dpp v{b}, v{FQ}, v{DO+4*t+3} row_newbcast:12 {DPPALL}")
        A(f"v_add_f32 v{a}, v{a}, v{b}")
        A(f"ds_write_b32 v{aRW}, v{a} offset:{t*1024}")
    om(0, 0)
    om(1, 0)
    om(0, 1)
    om(1, 1)
    om(2, 0)
    om(3, 0)
    A.mark_done(list(range(DO, DO + 4)), 3)
    ow(0)
    om(2, 1)
    A(f"v_cmp_u_f32 vcc, v{T}, v{T}")
    om(3, 1)
    retry("L_o_again")
    ow(1)
    om(4, 0)
    om(4, 1)
    ow(2)
    ow(3)
    ow(4)
    stamp(6)
    A("s_waitcnt lgkmcnt(0)")

    A.label("L_rg")
    A("s_barrier")
    A(f"ds_read_b128 {r4(G)}, v{aRD}")
    A(f"s_add_u32 {sPO}, {sLO}, {LST}")

    def tree(fill=None):
        A(f"v_permlane32_swap_b32 v{G}, v{G+2}\nv_permlane32_swap_b32 v{G+1}, v{G+3}")
        A(f"v_add_f32 v{T}, v{G}, v{G+2}\nv_add_f32 v{T+1}, v{G+1}, v{G+3}")
        if fill:
            fill()
        A(f"v_permlane16_swap_b32 v{T}, v{T+1}")
        A(f"v_add_f32 v{T}, v{T}, v{T+1}")
    A("s_waitcnt lgkmcnt(0)")
    tree()
    A(f"v_add_f32_dpp v{T}, v{T}, v{T} row_ror:8 {DPPALL}")
    A(f"v_min_u32 v{T}, -2, v{T}")
    A(f"buffer_store_dword v{T}, v{aXS}, {WS}, {sXPO} offen sc1")
    stamp(7)
    l = lab("last")
    A(f"s_cmp_eq_u32 {sL}, 3\ns_cbranch_scc0 {l}\ns_cmp_eq_u32 {sK}, {sC}\ns_cbranch_scc0 L_w_next")
    A(f"s_mov_b64 {lo(PUB)}, {lo(OUT)}\ns_mov_b32 s18, 2304\ns_mov_b32 {sPO}, 0\nv_mov_b32 v{aPB}, v{aIO}")
    A.label(l)
    l = lab("nores")
    A(f"s_or_b32 s96, {sL}, {sW}\ns_cbranch_scc0 L_cs2\ns_cmp_eq_u32 {sL}, 0\ns_cbranch_scc1 {l}")
    A(f"buffer_load_dword v{XV}, v{aXR}, {WS}, {sXRO} offen sc1")
    A.label(l)
    if P["pre_g"]:
        A(f"s_sleep {P['pre_g']}")
    A.label("L_rg2")
    A(f"s_add_u32 s97, {sXRO}, {XRL}")
    poll([f"buffer_load_dwordx4 {r4(G)}, v{aXG}, {WS}, {sXPO} offen sc1"], chk([G, G + 1, G + 2, G + 3]), P["dg"], 0, P["stag_g"])
    stamp(8)
    tree(loc_test)
    A(f"v_add_f32 v{XV}, v{XV}, v{T}")
    A(f"v_add_f32_dpp v{XV}, v{T}, v{XV} row_ror:8 {DPPALL}")
    A(f"v_cvt_pk_bf16_f32 v{T}, v{XV}, v{XV}\nv_min_u32 v{T}, 0xfffefffe, v{T}")
    store_mode(f"buffer_store_short v{T}, v{aPB}, {PUB}, {sPO} offen")
    stamp(9)
    A(f"s_cmp_eq_u32 {sL}, 3\ns_cbranch_scc1 L_w_next")
    loc_test()
    A(f"v_mul_f32 v{T+3}, v{XV}, v{XV}\nv_mov_b32 v{T+2}, v{XV}")
    store_mode(f"buffer_store_dword v{XV}, v{aXR}, {WS}, s97 offen")
    A(f"v_permlane32_swap_b32 v{T+2}, v{T+3}")
    A(f"v_add_f32 v{T+4}, v{T+2}, v{T+3}\nv_add_f32 v{T+2}, v{T+2}, v{T+3}")
    A(f"v_permlane16_swap_b32 v{T+2}, v{T+4}")
    A(f"v_add_f32 v{T+2}, v{T+2}, v{T+4}")
    for d in ("quad_perm:[1,0,3,2]", "quad_perm:[2,3,0,1]"):
        A(f"v_add_f32_dpp v{T+2}, v{T+2}, v{T+2} {d} {DPPALL}")
    A(f"v_mul_f32 v{T+2}, {sHALF}, v{T+2}\nv_min_u32 v{T+2}, -2, v{T+2}")
    A("s_waitcnt vmcnt(0)")
    store_mode(f"buffer_store_dword v{T+2}, v{aSM}, {WS}, {sPO} offen")
    stamp(10)
    A.label("L_w_next")
    keep([3, 4, 5, 6, 7, 8, 9, 10])
    A(f"s_cmp_eq_u32 {sL}, 3\ns_cbranch_scc1 L_w_end")
    A(f"s_add_u32 {sL}, {sL}, 1\ns_add_u32 {sLO}, {sLO}, {LST}\ns_add_u32 {sXPO}, {sXPO}, {XPL}\ns_add_u32 {sXRO}, {sXRO}, {XRL}")
    A.settle()
    A(f"s_cmp_lt_u32 {sW}, 4\ns_cbranch_scc1 L_q_loop\ns_branch L_o_loop")
    A.label("L_w_end")
    keep([12, 13, 14, 15], False)
    dump(1, [0, 1, 2], [12, 13, 14, 15], [(None, 0, 4, True), (None, 0, 5, False), (None, 6, 6, False), (None, 2, 15, False)])
    ta, tb = f"s_cmp_eq_u32 {sTY}, 0", f"s_cmp_eq_u32 {sTY}, 1"
    dump(5, [3, 4, 5, 6, 7, 8, 9, 10], [], [(ta, 11, 9, False), (ta, 13, 10, False), (tb, 25, 12, False), (ta, 37, 13, False), (f"s_add_u32 s98, {sK}, 8\ns_cmp_eq_u32 s98, {sIDX}", 49, 14, False)])
    A.label("L_end")
    A("s_endpgm")
    for t in tails:
        A.raw(t)
    A.label("L_text_end")
    A.raw(f""".section .rodata,"a"
.p2align 6
.amdhsa_kernel {N}_kernel
  .amdhsa_next_free_vgpr 256
  .amdhsa_next_free_sgpr 102
  .amdhsa_accum_offset 256
  .amdhsa_group_segment_fixed_size 0
  .amdhsa_kernarg_size 104
  .amdhsa_user_sgpr_count 2
  .amdhsa_user_sgpr_kernarg_segment_ptr 1
  .amdhsa_system_sgpr_workgroup_id_x 1
.end_amdhsa_kernel""")
    return A.text()


if __name__ == "__main__":
    out = sys.argv[1]
    kw = {}
    for a in sys.argv[2:]:
        k, v = a.split("=")
        try:
            v = eval(v)
        except Exception:
            pass
        kw[k] = v
    open(out, "w").write(gen(**kw))
```
